```python
import torch

def _softmax(x, axis=-1):
    return torch.softmax(x, dim=axis)
def _gelu(x):
    return torch.nn.functional.gelu(x, approximate="tanh")
def _silu(x):
    return torch.nn.functional.silu(x)
def _sigmoid(x):
    return torch.sigmoid(x)
def _layernorm(x, axis=-1, eps=1e-5):
    m = x.mean(dim=axis, keepdim=True)
    v = x.var(dim=axis, keepdim=True, unbiased=False)
    return (x - m) / torch.sqrt(v + eps)
def _scatter_add(tgt, idx, src, axis=0):
    return tgt.clone().index_add_(axis, idx, src)
def _segment_sum(src, seg, n):
    out = torch.zeros((n,) + src.shape[1:], dtype=src.dtype)
    return out.index_add_(0, seg, src)
def _pad(x, pw):
    flat = tuple(v for pair in reversed(pw) for v in pair)
    return torch.nn.functional.pad(x, flat)

kernel_name = 'sequential_preLN__gqa_block_cached__geglu_ffn__decode'

def setup_inputs():

    _w = (lambda a: (lambda t: t.to(torch.bfloat16) if t.is_floating_point() else t)(torch.as_tensor(a)))
    def _A_setup():
        B, Sq, D = 1, 1, 1024
        Hq, Hkv, Sk, Dh = 32, 4, 65536, 128
        assert Hq % Hkv == 0, (Hq, Hkv)
        return {
            "x": _w((lambda *s: torch.randn(*s, dtype=torch.bfloat16) * 0.05)(B, Sq, D)),
            "k_cache": _w((lambda *s: torch.randn(*s, dtype=torch.bfloat16) * 3.2)(B, Hkv, Sk, Dh)),
            "v_cache": _w((lambda *s: torch.randn(*s, dtype=torch.bfloat16) * 0.4)(B, Hkv, Sk, Dh)),
            "wq": _w((lambda *s: torch.randn(*s, dtype=torch.bfloat16) * 3.2)(D, Hq * Dh) * (D ** -0.5)),
            "wo": _w((lambda *s: torch.randn(*s, dtype=torch.bfloat16) * 0.4)(Hq * Dh, D) * ((Hq * Dh) ** -0.5)),
        }
    _A_in = _A_setup()

    def _B_setup():
        B, S, D, F = 1, 1, 1024, 3584
        return {
            "x": _w((lambda *s: torch.randn(*s, dtype=torch.bfloat16) * 0.05)(B, S, D)),
            "w_gate": _w((lambda *s: torch.randn(*s, dtype=torch.bfloat16) * 0.05)(D, F)),
            "w_up": _w((lambda *s: torch.randn(*s, dtype=torch.bfloat16) * 0.05)(D, F)),
            "w_down": _w((lambda *s: torch.randn(*s, dtype=torch.bfloat16) * 0.05)(F, D)),
        }
    _B_in = _B_setup()

    return {
        "A_x": _A_in["x"],
        "A_k_cache": _A_in["k_cache"],
        "A_v_cache": _A_in["v_cache"],
        "A_wq": _A_in["wq"],
        "A_wo": _A_in["wo"],
        "B_x": _B_in["x"],
        "B_w_gate": _B_in["w_gate"],
        "B_w_up": _B_in["w_up"],
        "B_w_down": _B_in["w_down"],
    }

def reference(A_x, A_k_cache, A_v_cache, A_wq, A_wo, B_x, B_w_gate, B_w_up, B_w_down):
    def _A_ref(x, k_cache, v_cache, wq, wo):
        B, Sq, D = x.shape
        Hq, Dh = 32, 128
        Hkv = k_cache.shape[1]
        rep = Hq // Hkv
        q = (lambda x, *d: x.permute(*d))((x @ wq).reshape(B, Sq, Hq, Dh), 0, 2, 1, 3)
        k = (lambda x, n, axis: torch.repeat_interleave(x, n, dim=axis))(k_cache, rep, axis=1)
        v = (lambda x, n, axis: torch.repeat_interleave(x, n, dim=axis))(v_cache, rep, axis=1)
        scores = torch.einsum("bhqd,bhkd->bhqk", q, k) * (Dh ** -0.5)
        p = _softmax(scores, axis=-1)
        o = torch.einsum("bhqk,bhkd->bhqd", p, v)
        return (lambda x, *d: x.permute(*d))(o, 0, 2, 1, 3).reshape(B, Sq, Hq * Dh) @ wo

    def _B_ref(x, w_gate, w_up, w_down):
        return (_gelu(x @ w_gate) * (x @ w_up)) @ w_down

    x = A_x
    h = x + _A_ref(_layernorm(x, axis=-1), A_k_cache, A_v_cache, A_wq, A_wo)
    h2 = h + _B_ref(_layernorm(h, axis=-1), B_w_gate, B_w_up, B_w_down)
    return h2
```

```python
import re

def _regs(tok):
    tok = tok.strip()
    if tok.startswith('-'): tok = tok[1:]
    m = re.match(r'^abs\((.*)\)$', tok)
    if m: tok = m.group(1)
    m = re.match(r'^([vsa])\[(\d+):(\d+)\]$', tok)
    if m:
        return [(m.group(1), i) for i in range(int(m.group(2)), int(m.group(3)) + 1)]
    m = re.match(r'^([vsa])(\d+)$', tok)
    if m:
        return [(m.group(1), int(m.group(2)))]
    if tok == 'vcc': return [('s', 'vcc_lo'), ('s', 'vcc_hi')]
    if tok in ('vcc_lo', 'vcc_hi'): return [('s', tok)]
    if tok == 'exec': return [('x', 'exec')]
    if tok == 'm0': return [('m', 'm0')]
    return []

TRANS = ('v_exp_f32', 'v_log_f32', 'v_rcp_f32', 'v_rsq_f32', 'v_sqrt_f32', 'v_sin_f32', 'v_cos_f32')

class Ins:
    __slots__ = ('text', 'op', 'dst', 'src', 'kind', 'states', 'dpp', 'srcC', 'passes','sgpr_src_vmem')
    def __init__(self, text):
        self.text = text
        t = text.split(';')[0].strip()
        parts = t.split(None, 1)
        self.op = parts[0]
        ops = []
        rest = parts[1] if len(parts) > 1 else ''
        cur = ''; depth = 0
        for ch in rest:
            if ch == '[': depth += 1
            if ch == ']': depth -= 1
            if ch == ',' and depth == 0:
                ops.append(cur.strip()); cur = ''
            else:
                cur += ch
        if cur.strip(): ops.append(cur.strip())
        mods = ''
        if ops:
            lp = ops[-1].split(None, 1)
            ops[-1] = lp[0]
            mods = lp[1] if len(lp) > 1 else ''
        op = self.op
        self.dpp = ('quad_perm' in mods or 'row_' in mods or 'wave_' in mods or '_dpp' in op)
        self.states = 1
        self.passes = 0
        self.srcC = []
        self.dst = []; self.src = []
        if op == 's_nop':
            self.kind = 'nop'; self.states = int(ops[0], 0) + 1; return
        if op.startswith('v_mfma'):
            self.kind = 'mfma'
            self.dst = _regs(ops[0]); self.src = _regs(ops[1]) + _regs(ops[2]); self.srcC = _regs(ops[3])
            if '16x16x32' in op or '16x16x16' in op: self.passes = 4
            elif '32x32x16' in op or '32x32x8' in op: self.passes = 8
            else: raise ValueError('unknown mfma ' + op)
            return
        if op.startswith('v_'):
            self.kind = 'valu'
            base = op.replace('_e32', '').replace('_e64', '').replace('_dpp', '')
            if base.startswith('v_cmp'):
                self.dst = _regs(ops[0]); self.src = sum((_regs(o) for o in ops[1:]), [])
            elif base.startswith('v_permlane') and 'swap' in base:
                self.kind = 'permlane'
                self.dst = _regs(ops[0]) + _regs(ops[1]); self.src = list(self.dst)
            elif base in ('v_readlane_b32', 'v_readfirstlane_b32'):
                self.kind = 'readlane'
                self.dst = _regs(ops[0]); self.src = sum((_regs(o) for o in ops[1:]), [])
            elif base in ('v_add_co_u32','v_sub_co_u32','v_addc_co_u32'):
                self.dst = _regs(ops[0]) + _regs(ops[1]); self.src = sum((_regs(o) for o in ops[2:]), [])
            else:
                self.dst = _regs(ops[0]); self.src = sum((_regs(o) for o in ops[1:]), [])
                if base in ('v_fmac_f32', 'v_dot2c_f32_bf16','v_writelane_b32'): self.src += self.dst
                if base == 'v_cndmask_b32' and len(ops) == 3: self.src += _regs('vcc')
                if self.dpp: self.src += []
                if base.startswith('v_dot2'): self.kind = 'dot'
                if base in TRANS: self.kind = 'trans'
            return
        if op.startswith('ds_'):
            self.kind = 'ds'
            if op.startswith('ds_read') or op.startswith('ds_bpermute') or op.startswith('ds_swizzle') or '_rtn' in op:
                self.dst = _regs(ops[0]); self.src = sum((_regs(o) for o in ops[1:]), [])
            else:
                self.src = sum((_regs(o) for o in ops), [])
            return
        if op.startswith('buffer_') or op.startswith('global_') or op.startswith('flat_'):
            self.kind = 'vmem'
            isload = ('load' in op)
            islds = (' lds' in (' ' + mods)) or ('load_lds' in op)
            if op in ('buffer_inv', 'buffer_wbl2'):
                return
            ret_atomic = ('atomic' in op and 'sc0' in mods)
            if (isload and not islds) or ret_atomic:
                self.dst = _regs(ops[0]); self.src = sum((_regs(o) for o in ops[1:]), [])
            else:
                self.src = sum((_regs(o) for o in ops), [])
            if islds: self.src += [('m', 'm0')]
            if ('store' in op) and ('x4' in op or 'x3' in op): self.kind = 'vmem_wstore'
            return
        if op.startswith('s_'):
            self.kind = 'salu'
            if op in ('s_waitcnt', 's_barrier', 's_endpgm', 's_sleep', 's_setprio') or op.startswith('s_cbranch') or op == 's_branch':
                return
            if op.startswith('s_cmp'):
                self.src = sum((_regs(o) for o in ops), []); return
            self.dst = _regs(ops[0]); self.src = sum((_regs(o) for o in ops[1:]), [])
            if 'saveexec' in op: self.dst += [('x', 'exec')]
            return
        raise ValueError('cannot parse: ' + text)

def is_valu(i): return i.kind in ('valu', 'permlane', 'readlane', 'dot', 'trans')
def vregs(l): return [r for r in l if r[0] in ('v', 'a')]
def sregs(l): return [r for r in l if r[0] == 's']

def required(prod, cons):
    need = 0
    pd = set(prod.dst)
    cs = set(cons.src); cC = set(cons.srcC); cd = set(cons.dst)
    if is_valu(prod):
        pv = set(vregs(prod.dst)); ps = set(sregs(prod.dst))
        if cons.dpp and is_valu(cons) and (pv & cs): need = max(need, 2)
        if cons.kind == 'permlane' and (pv & cs): need = max(need, 2)
        if cons.kind == 'readlane' and (pv & cs): need = max(need, 1)
        if cons.kind == 'mfma' and (pv & (cs | cC)): need = max(need, 2)
        if ps:
            if is_valu(cons) and (ps & cs): need = max(need, 2)
            if cons.kind == 'readlane' and (ps & cs): need = max(need, 4)
            if cons.kind.startswith('vmem') and (ps & cs): need = max(need, 5)
        if prod.kind == 'trans' and is_valu(cons) and cons.kind != 'trans' and (pv & cs): need = max(need, 1)
        if prod.kind == 'trans' and cons.kind == 'mfma' and (pv & (cs|cC)): need = max(need, 2)
        if prod.kind == 'dot':
            if cons.kind == 'dot' and cons.op.replace('_e32','') == prod.op.replace('_e32',''):
                ab = set(cons.src[:-1]) if cons.src else set()
                if pv & ab: need = max(need, 3)
            elif (is_valu(cons) or cons.kind in ('mfma','ds') or cons.kind.startswith('vmem')) and (pv & (cs | cd | cC)): need = max(need, 3)
        if ('x', 'exec') in pd:
            if cons.kind == 'mfma': need = max(need, 4)
            if cons.dpp: need = max(need, 5)
    if prod.kind == 'mfma':
        p = prod.passes
        d = set(prod.dst)
        if cons.kind == 'mfma':
            if d & cs: need = max(need, {4: 8, 8: 12}[p])
            if d & cC:
                if set(cons.srcC) == d and cons.passes == p: pass
                else: need = max(need, {4: 6, 8: 10}[p])
            if (d & cd) and not (d & cC): need = max(need, {4: 6, 8: 10}[p])
        elif is_valu(cons) or cons.kind == 'ds' or cons.kind.startswith('vmem'):
            if d & (cs | cd): need = max(need, {4: 8, 8: 12}[p])
        if is_valu(cons) and (set(prod.srcC) & cd): need = max(need, {4: 3, 8: 7}[p])
    if prod.kind == 'salu':
        if ('m', 'm0') in pd and ('m', 'm0') in cs and cons.kind.startswith('vmem'): need = max(need, 1)
    if prod.kind == 'vmem_wstore':
        data = set(vregs(prod.src))
        if (is_valu(cons) and (data & cd)): need = max(need, 2)
        elif data & cd: need = max(need, 1)
    return need

class Asm:
    def __init__(self):
        self.lines = []
        self.hist = []
        self.nnops = 0
    def raw(self, s):
        self.lines.append(s)
    def label(self, name):
        self.lines.append(name + ':')
    def comment(self, s):
        self.lines.append('  ; ' + s)
    def __call__(self, text):
        for t in text.split('\n'):
            t = t.strip()
            if not t or t.startswith(';'):
                continue
            if t.endswith(':'):
                self.label(t[:-1]); continue
            ins = Ins(t)
            dist = 0; need_extra = 0
            for prev in reversed(self.hist):
                r = required(prev, ins)
                if r > dist: need_extra = max(need_extra, r - dist)
                dist += prev.states
                if dist >= 20: break
            while need_extra > 0:
                k = min(need_extra, 16)
                n = Ins('s_nop %d' % (k - 1))
                self.lines.append('  s_nop %d' % (k - 1)); self.hist.append(n); self.nnops += 1
                need_extra -= k
            self.lines.append('  ' + t)
            self.hist.append(ins)
            if len(self.hist) > 64: self.hist = self.hist[-40:]
    def flush_hazards(self, n=20):
        self('s_nop 15'); self('s_nop 3')
    def text(self):
        return '\n'.join(self.lines) + '\n'
```

```python
import sys, argparse
sys.path.insert(0, 'gen')
from asmlib import Asm

KNAME = 'sequential_preLN__gqa_block_cached__geglu_ffn__decode_kernel'

WS_E = 0
WS_Q = 0x1000
WS_ML = 0x20000
WS_A = 0x40000;  ASTR = 8192 + 256
WS_B = 0x150000; BSTR = 4096 + 256
WS_C = 0x1E0000
WS_D = 0x200000; DSTR = 4096 + 256
WS_TS = 0x8000000
L_KR = 0
L_QF = 98304
L_QRED = L_QF + 2048
L_CNT = L_QRED + 1024
L_OP = L_CNT + 64
HSTR = 528
WSTR = 8 * HSTR + 64
L_RED = L_OP + 4 * WSTR
L_VEC = L_RED + 1024
L_END = L_VEC + 256
SPIN_LIMIT = 400000

def vr(a, n=1):
    return 'v%d' % a if n == 1 else 'v[%d:%d]' % (a, a + n - 1)
def sr(a, n=1):
    return 's%d' % a if n == 1 else 's[%d:%d]' % (a, a + n - 1)

P_X, P_K, P_V, P_WQ, P_WO, P_BX, P_WG, P_WU = 16, 18, 20, 22, 24, 26, 28, 30
P_WD, P_OUT, P_DBG, P_WS = 32, 34, 36, 38
S_T, S_G, S_C, S_R, S_IDX, S_T8, S_T12, S_T16 = 40, 41, 42, 43, 44, 45, 46, 47
SRD_A, SRD_B, SRD_C = 48, 52, 56
S_SELLO, S_SELHI, S_SCALE, S_LOG2E = 60, 61, 62, 63
S_TS = 64
S_SPIN, S_HI16, S_M8, S_M12, S_M16, S_RING = 96, 97, 98, 99, 100, 101

class Gen:
    def __init__(self, diag=False, ngroups=8):
        self.a = Asm()
        self.diag = diag
        self.ng = ngroups
        self.uid = 0
        self.nstamp = 0
    def lab(self, p='L'):
        self.uid += 1
        return '%s_%d' % (p, self.uid)
    def stamp(self, k):
        if self.diag:
            self.a('s_memrealtime %s' % sr(S_TS + 2 * k, 2))
    def dump_stamps(self):
        if not self.diag: return
        a = self.a
        a('s_waitcnt vmcnt(0) lgkmcnt(0)')
        a('s_mov_b64 exec, -1')
        a('s_lshl_b32 s4, s2, 3')
        a('s_add_u32 s4, s4, s3')
        a('s_lshl_b32 s4, s4, 7')
        a('s_add_u32 s4, s4, 0x%x' % WS_TS)
        a('v_mov_b32 v1, s4')
        a('s_mov_b64 exec, 1')
        for i in range(8):
            for k in range(4):
                a('v_mov_b32 v%d, s%d' % (4 + k, S_TS + 4 * i + k))
            a('global_store_dwordx4 v1, v[4:7], %s offset:%d' % (sr(P_WS, 2), 16 * i))
            a('s_nop 1')
        a('s_waitcnt vmcnt(0)')

    def srd(self, s, ptr, size, off_sregs=None):
        a = self.a
        if off_sregs is None:
            a('s_mov_b32 s%d, s%d' % (s, ptr))
            a('s_and_b32 s%d, s%d, 0xffff' % (s + 1, ptr + 1))
        else:
            a('s_add_u32 s%d, s%d, %s' % (s, ptr, off_sregs))
            a('s_addc_u32 s%d, s%d, 0' % (s + 1, ptr + 1))
            a('s_and_b32 s%d, s%d, 0xffff' % (s + 1, s + 1))
        a('s_mov_b32 s%d, 0x%x' % (s + 2, size))
        a('s_mov_b32 s%d, 0x20000' % (s + 3))

    def dpp(self, mod):
        return '%s row_mask:0xf bank_mask:0xf' % mod

    def wave_reduce(self, regs, tmp, op='v_add_f32'):
        a = self.a
        for mod in ('quad_perm:[1,0,3,2]', 'quad_perm:[2,3,0,1]', 'row_half_mirror', 'row_mirror'):
            for r in regs:
                a('%s_dpp v%d, v%d, v%d %s' % (op, r, r, r, self.dpp(mod)))
        for sw in ('v_permlane16_swap_b32', 'v_permlane32_swap_b32'):
            for r, t in zip(regs, tmp):
                a('v_mov_b32 v%d, v%d' % (t, r))
            for r, t in zip(regs, tmp):
                a('%s v%d, v%d' % (sw, t, r))
            for r, t in zip(regs, tmp):
                a('%s v%d, v%d, v%d' % (op, r, r, t))

    def halve(self, pairs, sw):
        a = self.a
        for x, y in pairs:
            a('%s v%d, v%d' % (sw, x, y))
        for x, y in pairs:
            a('v_add_f32 v%d, v%d, v%d' % (x, x, y))

    def rnd_bf16(self, dst, src):
        a = self.a
        a('v_cvt_pk_bf16_f32 v%d, v%d, v%d' % (dst, src, src))
        a('v_and_b32 v%d, s%d, v%d' % (dst, S_HI16, dst))

    def unpack(self, lo, hi, src):
        a = self.a
        a('v_lshlrev_b32 v%d, 16, v%d' % (lo, src))
        a('v_and_b32 v%d, s%d, v%d' % (hi, S_HI16, src))

    def poll_begin(self):
        l = self.lab('L_poll')
        self.a('s_mov_b32 s%d, 0' % S_SPIN)
        self.a.label(l)
        return l
    def poll_end(self, l, vbad, smask):
        a = self.a
        ok = self.lab('L_ok')
        a('v_and_b32 v%d, s%d, v%d' % (vbad, smask, vbad))
        a('v_cmp_ne_u32 vcc, 0, v%d' % vbad)
        a('s_cbranch_vccz %s' % ok)
        a('s_add_u32 s%d, s%d, 1' % (S_SPIN, S_SPIN))
        a('s_cmp_lt_u32 s%d, %d' % (S_SPIN, SPIN_LIMIT))
        a('s_cbranch_scc1 %s' % l)
        a('s_branch L_abort')
        a.label(ok)
    def untag(self, regs, vT, vbad):
        a = self.a
        for r in regs:
            a('v_xor_b32 v%d, v%d, v%d' % (r, vT, r))
        first = True
        i = 0
        while i < len(regs):
            if first:
                if len(regs) - i >= 2:
                    a('v_or_b32 v%d, v%d, v%d' % (vbad, regs[i], regs[i + 1])); i += 2
                else:
                    a('v_mov_b32 v%d, v%d' % (vbad, regs[i])); i += 1
                first = False
            elif len(regs) - i >= 2:
                a('v_or3_b32 v%d, v%d, v%d, v%d' % (vbad, vbad, regs[i], regs[i + 1])); i += 2
            else:
                a('v_or_b32 v%d, v%d, v%d' % (vbad, vbad, regs[i])); i += 1

    def layernorm_stats(self, f, n, t0):
        a = self.a
        s, tt, q = t0, t0 + 1, t0 + 2
        mb, sb, ri = t0 + 4, t0 + 5, t0 + 6
        a('v_add_f32 v%d, v%d, v%d' % (s, f[0], f[1]))
        a('v_add_f32 v%d, v%d, v%d' % (q, f[2], f[3]))
        for i in range(4, n, 2):
            a('v_add_f32 v%d, v%d, v%d' % (s, s, f[i]))
            a('v_add_f32 v%d, v%d, v%d' % (q, q, f[i + 1]))
        a('v_add_f32 v%d, v%d, v%d' % (s, s, q))
        self.wave_reduce([s], [tt])
        a('v_mul_f32 v%d, 0x3a800000, v%d' % (s, s))
        a('v_sub_f32 v%d, v%d, v%d' % (tt, f[0], s))
        a('v_mul_f32 v%d, v%d, v%d' % (q, tt, tt))
        for i in range(1, n):
            a('v_sub_f32 v%d, v%d, v%d' % (tt, f[i], s))
            a('v_fmac_f32 v%d, v%d, v%d' % (q, tt, tt))
        self.wave_reduce([q], [tt])
        a('v_mul_f32 v%d, 0x3a800000, v%d' % (q, q))
        self.rnd_bf16(mb, s)
        self.rnd_bf16(q, q)
        a('v_add_f32 v%d, 0x3727c5ac, v%d' % (q, q))
        self.rnd_bf16(q, q)
        a('v_sqrt_f32 v%d, v%d' % (q, q))
        self.rnd_bf16(sb, q)
        a('v_rcp_f32 v%d, v%d' % (ri, sb))
        return mb, sb, ri

    def normalize_pairs(self, f, mb, sb, ri, out, t0):
        a = self.a
        d0, d1, q0, q1 = t0, t0 + 1, t0 + 2, t0 + 3
        for k in range(len(f) // 2):
            a('v_sub_f32 v%d, v%d, v%d' % (d0, f[2 * k], mb))
            a('v_sub_f32 v%d, v%d, v%d' % (d1, f[2 * k + 1], mb))
            a('v_cvt_pk_bf16_f32 v%d, v%d, v%d' % (d1, d0, d1))
            a('v_lshlrev_b32 v%d, 16, v%d' % (d0, d1))
            a('v_and_b32 v%d, s%d, v%d' % (d1, S_HI16, d1))
            a('v_mul_f32 v%d, v%d, v%d' % (q0, d0, ri))
            a('v_mul_f32 v%d, v%d, v%d' % (q1, d1, ri))
            a('v_fma_f32 v%d, -v%d, v%d, v%d' % (d0, q0, sb, d0))
            a('v_fma_f32 v%d, -v%d, v%d, v%d' % (d1, q1, sb, d1))
            a('v_fmac_f32 v%d, v%d, v%d' % (q0, d0, ri))
            a('v_fmac_f32 v%d, v%d, v%d' % (q1, d1, ri))
            a('v_cvt_pk_bf16_f32 v%d, v%d, v%d' % (out[k], q0, q1))

    def pair_inplace(self, base, npairs, tmp):
        a = self.a
        for tp in range(npairs):
            A = base + 8 * tp; B = A + 4
            for i in range(4):
                a('v_perm_b32 v%d, v%d, v%d, s%d' % (tmp + (i & 1), B + i, A + i, S_SELLO))
                a('v_perm_b32 v%d, v%d, v%d, s%d' % (B + i, B + i, A + i, S_SELHI))
                a('v_mov_b32 v%d, v%d' % (A + i, tmp + (i & 1)))

    def dot_paired(self, base, npairs, xp, acc):
        a = self.a
        for tp in range(npairs):
            A = base + 8 * tp; B = A + 4
            for i in range(4):
                c0 = '0' if tp == 0 else 'v%d' % acc[2 * i]
                c1 = '0' if tp == 0 else 'v%d' % acc[2 * i + 1]
                a('v_dot2_f32_bf16 v%d, v%d, v%d, %s' % (acc[2 * i], A + i, xp[tp], c0))
                a('v_dot2_f32_bf16 v%d, v%d, v%d, %s' % (acc[2 * i + 1], B + i, xp[tp], c1))

    def build(self):
        a = self.a
        nthreads = 512
        a.raw('; @launch grid=(256,1,1) block=(%d,1,1) lds=%d' % (nthreads, L_END))
        a.raw('.amdgcn_target "amdgcn-amd-amdhsa--gfx950"')
        a.raw('.text')
        a.raw('.globl %s\n.p2align 8\n.type %s,@function\n%s:' % (KNAME, KNAME, KNAME))
        a('s_cmp_ge_u32 s2, 256')
        a('s_cbranch_scc1 L_exit')
        if self.diag:
            for k in range(16): a('s_mov_b64 %s, 0' % sr(S_TS + 2 * k, 2))
        self.stamp(0)
        a('s_load_dwordx16 s[16:31], s[0:1], 0')
        a('s_load_dwordx8 s[32:39], s[0:1], 64')
        a('v_lshrrev_b32 v1, 6, v0')
        a('v_and_b32 v0, 63, v0')
        a('v_readfirstlane_b32 s3, v1')
        a('s_lshr_b32 s%d, s2, 3' % S_R)
        a('s_and_b32 s%d, s%d, 3' % (S_G, S_R))
        a('s_lshr_b32 s4, s%d, 2' % S_R)
        a('s_lshl_b32 s4, s4, 3')
        a('s_and_b32 s5, s2, 7')
        a('s_add_u32 s%d, s4, s5' % S_C)
        a('s_mov_b32 s%d, 0x05040100' % S_SELLO)
        a('s_mov_b32 s%d, 0x07060302' % S_SELHI)
        a('s_mov_b32 s%d, 0x3db504f3' % S_SCALE)
        a('s_mov_b32 s%d, 0x3fb8aa3b' % S_LOG2E)
        a('s_mov_b32 s%d, 0xffff0000' % S_HI16)
        a('s_mov_b32 s%d, 0xffffff00' % S_M8)
        a('s_mov_b32 s%d, 0xfffff000' % S_M12)
        a('s_waitcnt lgkmcnt(0)')
        a('s_cmp_ge_u32 s3, 4')
        a('s_cbranch_scc1 L_swave')
        self.hwave()
        self.swave()
        a.label('L_abort')
        if self.diag:
            self.dump_stamps()
        a('s_endpgm')
        a.label('L_exit')
        a('s_endpgm')
        a.raw('.section .rodata,"a"\n.p2align 6\n.amdhsa_kernel %s' % KNAME)
        a.raw('  .amdhsa_next_free_vgpr 256\n  .amdhsa_next_free_sgpr 102\n  .amdhsa_accum_offset 256')
        a.raw('  .amdhsa_group_segment_fixed_size 0\n  .amdhsa_kernarg_size 96\n  .amdhsa_user_sgpr_count 2')
        a.raw('  .amdhsa_user_sgpr_kernarg_segment_ptr 1\n  .amdhsa_system_sgpr_workgroup_id_x 1\n.end_amdhsa_kernel')
        return a.text()

    def swave(self):
        a = self.a
        ng = self.ng
        a.label('L_swave')
        vKsrc = [2, 3, 4, 5]; vVsrc = 6; vKrd = [7, 8, 9, 10]
        vM, vL, vAl, vNM = 12, 13, 14, 11
        Q = 16; D = 32; S = 40; P = 48; T = 52
        ACC = 64; KT = 96; VT = 128; VR = 160
        a('s_sub_u32 s3, s3, 4')
        a('s_lshl_b32 s4, s%d, 24' % S_G)
        a('s_mul_i32 s5, s%d, %d' % (S_C, 4 * ng * 32 * 256))
        a('s_add_u32 s4, s4, s5')
        a('s_mul_i32 s5, s3, %d' % (ng * 32 * 256))
        a('s_add_u32 s4, s4, s5')
        self.srd(SRD_A, P_K, ng * 8192, 's4')
        self.srd(SRD_B, P_V, ng * 8192, 's4')
        a('s_mul_i32 s%d, s3, 24576' % S_RING)
        a('v_lshrrev_b32 v14, 4, v0')
        a('v_and_b32 v15, 15, v0')
        for i in range(4):
            a('v_lshlrev_b32 v11, 2, v14')
            a('v_add_u32 v11, %d, v11' % i)
            a('v_xor_b32 v11, v11, v15')
            a('v_lshlrev_b32 v11, 4, v11')
            a('v_lshl_add_u32 v%d, v14, 8, v11' % vKsrc[i])
        a('v_lshlrev_b32 v%d, 4, v0' % vVsrc)
        a('v_and_b32 v16, 3, v15')
        a('v_lshrrev_b32 v17, 2, v15')
        a('v_lshl_add_u32 v18, v16, 2, v17')
        a('v_lshlrev_b32 v18, 8, v18')
        a('v_add_u32 v18, s%d, v18' % S_RING)
        a('v_xor_b32 v19, v14, v16')
        for s in range(4):
            a('v_xor_b32 v20, %d, v17' % s)
            a('v_lshl_add_u32 v20, v20, 2, v19')
            a('v_lshl_add_u32 v%d, v20, 4, v18' % vKrd[s])
        a('v_and_b32 v21, 7, v15')
        a('v_lshlrev_b32 v21, 8, v21')
        a('v_lshl_add_u32 v21, v14, 4, v21')
        a('v_add_u32 v21, %d, v21' % L_QF)
        a('s_mul_i32 s6, s3, %d' % WSTR)
        a('s_add_u32 s6, s6, %d' % L_OP)
        a('v_mul_u32_u24 v22, %d, v15' % HSTR)
        a('v_lshl_add_u32 v22, v14, 7, v22')
        a('v_add_u32 v1, s6, v22')
        a('v_mov_b32 v15, v21')
        a('s_barrier')
        vm = []
        def issueK(i):
            slot = i % 3
            a('s_mov_b32 s4, %d' % (i * 8192))
            a('s_mov_b32 s5, %d' % (i * 8192 + 4096))
            a('s_add_u32 m0, s%d, %d' % (S_RING, slot * 8192))
            for ii in range(4):
                a('buffer_load_dwordx4 v%d, %s, s4 offen offset:%d nt lds' % (vKsrc[ii], sr(SRD_A, 4), ii * 1024))
                vm.append(('K', i))
            a('s_add_u32 m0, s%d, %d' % (S_RING, slot * 8192 + 4096))
            for ii in range(4):
                a('buffer_load_dwordx4 v%d, %s, s5 offen offset:%d nt lds' % (vKsrc[ii], sr(SRD_A, 4), ii * 1024))
                vm.append(('K', i))
        def issueV(i):
            slot = i % 3
            a('s_mov_b32 s6, %d' % (i * 8192))
            a('s_mov_b32 s7, %d' % (i * 8192 + 4096))
            for t in range(8):
                a('buffer_load_dwordx4 %s, v%d, %s, s%d offen offset:%d nt' % (
                    vr(VR + slot * 32 + 4 * t, 4), vVsrc, sr(SRD_B, 4), 6 if t < 4 else 7, (t & 3) * 1024))
                vm.append(('V', i))
        def waitvm(tag):
            idx = max(k for k, x in enumerate(vm) if x == tag)
            n = len(vm) - 1 - idx
            a('s_waitcnt vmcnt(%d)' % n)
            del vm[:idx + 1]
        for i in range(min(3, ng)):
            issueK(i); issueV(i)
        self.stamp(1)
        a('s_barrier')
        self.stamp(2)
        for s in range(4):
            a('ds_read_b128 %s, v15 offset:%d' % (vr(Q + 4 * s, 4), s * 64))
        a('v_mov_b32 v%d, 0xff800000' % vM)
        a('v_mov_b32 v%d, 0' % vL)
        for i in range(32):
            a('v_mov_b32 v%d, 0' % (ACC + i))
        a('s_waitcnt lgkmcnt(0)')
        for i in range(ng):
            slot = i % 3
            waitvm(('K', i))
            for u in range(2):
                for s in range(4):
                    a('ds_read_b128 %s, v%d offset:%d' % (vr(KT + 16 * u + 4 * s, 4), vKrd[s], slot * 8192 + u * 4096))
            a('s_waitcnt lgkmcnt(4)')
            for s in range(4):
                a('v_mfma_f32_16x16x32_bf16 %s, %s, %s, %s' % (vr(D, 4), vr(KT + 4 * s, 4), vr(Q + 4 * s, 4), '0' if s == 0 else vr(D, 4)))
            a('s_waitcnt lgkmcnt(0)')
            for s in range(4):
                a('v_mfma_f32_16x16x32_bf16 %s, %s, %s, %s' % (vr(D + 4, 4), vr(KT + 16 + 4 * s, 4), vr(Q + 4 * s, 4), '0' if s == 0 else vr(D + 4, 4)))
            if i + 3 < ng: issueK(i + 3)
            for k in range(4):
                a('v_cvt_pk_bf16_f32 v%d, v%d, v%d' % (T + k, D + 2 * k, D + 2 * k + 1))
            for k in range(4):
                self.unpack(S + 2 * k, S + 2 * k + 1, T + k)
            for k in range(8):
                a('v_mul_f32 v%d, s%d, v%d' % (S + k, S_SCALE, S + k))
            for k in range(4):
                a('v_cvt_pk_bf16_f32 v%d, v%d, v%d' % (T + k, S + 2 * k, S + 2 * k + 1))
            for k in range(4):
                self.unpack(S + 2 * k, S + 2 * k + 1, T + k)
            a('v_max3_f32 v%d, v%d, v%d, v%d' % (T, S, S + 1, S + 2))
            a('v_max3_f32 v%d, v%d, v%d, v%d' % (T + 1, S + 3, S + 4, S + 5))
            a('v_max3_f32 v%d, v%d, v%d, v%d' % (T, T, S + 6, S + 7))
            a('v_max3_f32 v%d, v%d, v%d, v%d' % (T, T, T + 1, vM))
            for sw in ('v_permlane16_swap_b32', 'v_permlane32_swap_b32'):
                a('v_mov_b32 v%d, v%d' % (T + 1, T))
                a('%s v%d, v%d' % (sw, T + 1, T))
                a('v_max_f32 v%d, v%d, v%d' % (T, T, T + 1))
            a('v_sub_f32 v%d, v%d, v%d' % (T + 1, vM, T))
            a('v_mul_f32 v%d, s%d, v%d' % (T + 1, S_LOG2E, T + 1))
            a('v_mul_f32 v%d, s%d, v%d' % (vNM, S_LOG2E, T))
            a('v_exp_f32 v%d, v%d' % (vAl, T + 1))
            a('v_mov_b32 v%d, v%d' % (vM, T))
            for k in range(8):
                a('v_fma_f32 v%d, v%d, s%d, -v%d' % (S + k, S + k, S_LOG2E, vNM))
            for k in range(8):
                a('v_exp_f32 v%d, v%d' % (S + k, S + k))
            a('v_add_f32 v%d, v%d, v%d' % (T, S, S + 1))
            a('v_add_f32 v%d, v%d, v%d' % (T + 1, S + 2, S + 3))
            a('v_add_f32 v%d, v%d, v%d' % (T + 2, S + 4, S + 5))
            a('v_add_f32 v%d, v%d, v%d' % (T + 3, S + 6, S + 7))
            a('v_add_f32 v%d, v%d, v%d' % (T, T, T + 1))
            a('v_add_f32 v%d, v%d, v%d' % (T + 2, T + 2, T + 3))
            a('v_add_f32 v%d, v%d, v%d' % (T, T, T + 2))
            a('v_fma_f32 v%d, v%d, v%d, v%d' % (vL, vL, vAl, T))
            for k in range(4):
                a('v_cvt_pk_bf16_f32 v%d, v%d, v%d' % (P + k, S + 2 * k, S + 2 * k + 1))
            if i > 0:
                for k in range(16):
                    a('v_pk_mul_f32 %s, %s, %s op_sel_hi:[1,0]' % (vr(ACC + 2 * k, 2), vr(ACC + 2 * k, 2), vr(vAl, 2)))
            waitvm(('V', i))
            R = VR + slot * 32
            for j in range(8):
                for rho in range(4):
                    a('v_perm_b32 v%d, v%d, v%d, s%d' % (VT + 4 * j + rho, R + 4 * (2 * rho + 1) + (j >> 1), R + 4 * (2 * rho) + (j >> 1), S_SELHI if (j & 1) else S_SELLO))
            if i + 3 < ng: issueV(i + 3)
            for j in range(8):
                a('v_mfma_f32_16x16x32_bf16 %s, %s, %s, %s' % (vr(ACC + 4 * j, 4), vr(VT + 4 * j, 4), vr(P, 4), vr(ACC + 4 * j, 4)))
            if i < 9: self.stamp(3 + i)
        for sw in ('v_permlane16_swap_b32', 'v_permlane32_swap_b32'):
            a('v_mov_b32 v%d, v%d' % (T + 1, vL))
            a('%s v%d, v%d' % (sw, T + 1, vL))
            a('v_add_f32 v%d, v%d, v%d' % (vL, vL, T + 1))
        a('v_and_b32 v%d, 8, v0' % T)
        a('v_cmp_eq_u32 vcc, 0, v%d' % T)
        a('s_and_saveexec_b64 s[4:5], vcc')
        for j in range(8):
            a('ds_write_b128 v1, %s offset:%d' % (vr(ACC + 4 * j, 4), j * 16))
        a('s_mov_b64 exec, 0xff')
        a('s_mul_i32 s6, s3, %d' % WSTR)
        a('s_add_u32 s6, s6, %d' % (L_OP + 8 * HSTR))
        a('v_lshlrev_b32 v%d, 3, v0' % T)
        a('v_add_u32 v%d, s6, v%d' % (T, T))
        a('ds_write_b64 v%d, %s' % (T, vr(vM, 2)))
        a('s_mov_b64 exec, -1')
        a('s_waitcnt lgkmcnt(0)')
        self.stamp(12)
        a('s_barrier')
        if self.diag:
            a('s_add_u32 s3, s3, 4')
            self.dump_stamps()
        a('s_endpgm')

    def hwave(self):
        a = self.a
        W0 = 64
        a('v_mov_b32 v6, %d' % L_CNT)
        a('v_mov_b32 v7, 0')
        a('ds_write_b32 v6, v7')
        a('s_waitcnt lgkmcnt(0)')
        a('s_load_dword s%d, %s, %d' % (S_T, sr(P_WS, 2), WS_E))
        self.srd(SRD_A, P_WQ, 0x800000)
        self.srd(SRD_B, P_X, 2048)
        a('s_lshr_b32 s8, s2, 2')
        a('s_and_b32 s9, s2, 3')
        a('s_lshl_b32 s10, s9, 8')
        a('s_lshl_b32 s11, s3, 6')
        a('s_add_u32 s10, s10, s11')
        a('v_lshlrev_b32 v2, 4, v0')
        a('v_lshrrev_b32 v3, 3, v0')
        a('v_lshlrev_b32 v4, 4, v3')
        a('s_lshl_b32 s5, s10, 1')
        a('buffer_load_dwordx4 v[16:19], v2, %s, 0 offen' % sr(SRD_B, 4))
        a('buffer_load_dwordx4 v[20:23], v2, %s, 0 offen offset:1024' % sr(SRD_B, 4))
        a('buffer_load_dwordx4 v[24:27], v4, %s, s5 offen' % sr(SRD_B, 4))
        a('v_and_b32 v5, 7, v0')
        a('v_lshlrev_b32 v5, 4, v5')
        a('v_lshl_add_u32 v5, v3, 16, v5')
        a('s_lshl_b32 s4, s10, 13')
        a('s_lshl_b32 s6, s8, 7')
        a('s_add_u32 s4, s4, s6')
        for t in range(8):
            a('buffer_load_dwordx4 %s, v5, %s, s4 offen nt' % (vr(W0 + 4 * t, 4), sr(SRD_A, 4)))
            if t < 7: a('s_add_u32 s4, s4, 8192')
        a('s_barrier')
        a('s_waitcnt lgkmcnt(0)')
        a('s_add_u32 s%d, s%d, 1' % (S_T, S_T))
        a('s_and_b32 s%d, s%d, 0xff' % (S_T8, S_T))
        a('s_and_b32 s%d, s%d, 0xfff' % (S_T12, S_T))
        a('s_and_b32 s%d, s%d, 0xffff' % (S_T16, S_T))
        a('s_waitcnt vmcnt(8)')
        F = list(range(32, 48))
        for k in range(8):
            self.unpack(32 + 2 * k, 33 + 2 * k, 16 + k)
        mb, sb, ri = self.layernorm_stats(F, 16, 48)
        for k in range(4):
            self.unpack(32 + 2 * k, 33 + 2 * k, 24 + k)
        XP = [16, 17, 18, 19]
        self.normalize_pairs(list(range(32, 40)), mb, sb, ri, XP, 56)
        self.stamp(1)
        a('s_waitcnt vmcnt(0)')
        self.stamp(2)
        acc = list(range(32, 40))
        for tp in range(4):
            A = W0 + 8 * tp; B = A + 4
            for i in range(4):
                a('v_perm_b32 v%d, v%d, v%d, s%d' % (20 + 2 * (i & 1), B + i, A + i, S_SELLO))
                a('v_perm_b32 v%d, v%d, v%d, s%d' % (21 + 2 * (i & 1), B + i, A + i, S_SELHI))
                c0 = '0' if tp == 0 else 'v%d' % acc[2 * i]
                c1 = '0' if tp == 0 else 'v%d' % acc[2 * i + 1]
                a('v_dot2_f32_bf16 v%d, v%d, v%d, %s' % (acc[2 * i], 20 + 2 * (i & 1), XP[tp], c0))
                a('v_dot2_f32_bf16 v%d, v%d, v%d, %s' % (acc[2 * i + 1], 21 + 2 * (i & 1), XP[tp], c1))
        self.halve([(acc[i], acc[i + 4]) for i in range(4)], 'v_permlane32_swap_b32')
        self.halve([(acc[i], acc[i + 2]) for i in range(2)], 'v_permlane16_swap_b32')
        for i in range(2):
            a('v_add_f32_dpp v%d, v%d, v%d %s' % (acc[i], acc[i], acc[i], self.dpp('row_ror:8')))
        a('v_and_b32 v20, 7, v0')
        a('v_lshlrev_b32 v20, 5, v20')
        a('v_lshrrev_b32 v21, 5, v0')
        a('v_lshl_add_u32 v20, v21, 4, v20')
        a('v_bfe_u32 v21, v0, 4, 1')
        a('v_lshl_add_u32 v20, v21, 3, v20')
        a('s_lshl_b32 s4, s3, 8')
        a('s_add_u32 s4, s4, %d' % L_QRED)
        a('v_add_u32 v20, s4, v20')
        a('ds_write_b64 v20, %s' % vr(acc[0], 2))
        a('s_waitcnt lgkmcnt(0)')
        a('s_mov_b64 exec, 1')
        a('v_mov_b32 v7, 1')
        a('ds_add_rtn_u32 v8, v6, v7')
        a('s_waitcnt lgkmcnt(0)')
        a('v_readfirstlane_b32 s4, v8')
        a('s_mov_b64 exec, -1')
        notlast = self.lab('L_qnl')
        a('s_cmp_eq_u32 s4, 3')
        a('s_cbranch_scc0 %s' % notlast)
        a('s_mov_b64 exec, 0xffff')
        a('v_add_u32 v20, %d, v2' % L_QRED)
        for w in range(4):
            a('ds_read_b128 %s, v20 offset:%d' % (vr(32 + 4 * w, 4), w * 256))
        a('s_lshr_b32 s4, s8, 4')
        a('s_lshl_b32 s4, s4, 14')
        a('s_lshl_b32 s5, s9, 12')
        a('s_add_u32 s4, s4, s5')
        a('s_and_b32 s5, s8, 15')
        a('s_lshl_b32 s5, s5, 8')
        a('s_add_u32 s4, s4, s5')
        a('s_add_u32 s4, s4, %d' % WS_Q)
        a('v_add_u32 v21, s4, v2')
        a('v_mov_b32 v22, s%d' % S_T8)
        a('s_waitcnt lgkmcnt(0)')
        for i in range(4):
            a('v_add_f32 v%d, v%d, v%d' % (32 + i, 32 + i, 36 + i))
            a('v_add_f32 v%d, v%d, v%d' % (40 + i, 40 + i, 44 + i))
        for i in range(4):
            a('v_add_f32 v%d, v%d, v%d' % (32 + i, 32 + i, 40 + i))
        for i in range(4):
            a('v_and_or_b32 v%d, v%d, s%d, v22' % (32 + i, 32 + i, S_M8))
        a('global_store_dwordx4 v21, v[32:35], %s sc1' % sr(P_WS, 2))
        a('s_mov_b64 exec, -1')
        a.label(notlast)
        self.stamp(3)
        a('s_lshl_b32 s4, s%d, 14' % S_G)
        a('s_lshl_b32 s5, s3, 10')
        a('s_add_u32 s4, s4, s5')
        a('s_add_u32 s4, s4, %d' % (WS_Q + 4096))
        a('v_add_u32 v20, s4, v2')
        a('v_add_u32 v21, 8192, v20')
        a('v_mov_b32 v22, s%d' % S_T8)
        a('s_mov_b32 s4, 0xff')
        l = self.poll_begin()
        a('global_load_dwordx4 v[32:35], v20, %s offset:-4096 sc1' % sr(P_WS, 2))
        a('global_load_dwordx4 v[36:39], v20, %s sc1' % sr(P_WS, 2))
        a('global_load_dwordx4 v[40:43], v21, %s offset:-4096 sc1' % sr(P_WS, 2))
        a('global_load_dwordx4 v[44:47], v21, %s sc1' % sr(P_WS, 2))
        a('s_waitcnt vmcnt(0)')
        self.untag(list(range(32, 48)), 22, 23)
        self.poll_end(l, 23, 4)
        for i in range(4):
            a('v_add_f32 v%d, v%d, v%d' % (32 + i, 32 + i, 36 + i))
            a('v_add_f32 v%d, v%d, v%d' % (40 + i, 40 + i, 44 + i))
        for i in range(4):
            a('v_add_f32 v%d, v%d, v%d' % (32 + i, 32 + i, 40 + i))
        a('v_cvt_pk_bf16_f32 v32, v32, v33')
        a('v_cvt_pk_bf16_f32 v33, v34, v35')
        a('s_lshl_b32 s4, s3, 9')
        a('s_add_u32 s4, s4, %d' % L_QF)
        a('v_lshlrev_b32 v20, 3, v0')
        a('v_add_u32 v20, s4, v20')
        a('ds_write_b64 v20, v[32:33]')
        a('s_waitcnt lgkmcnt(0)')
        a('s_barrier')
        self.stamp(4)
        a('s_cmp_lt_u32 s2, 128')
        a('s_cbranch_scc1 L_hx')
        a('s_cmp_lt_u32 s2, 240')
        a('s_cbranch_scc1 L_hy')
        a('s_barrier')
        self.stamp(6)
        self.merge_publish()
        self.stamp(7)
        self.dump_stamps()
        a('s_endpgm')
        self.hx()
        self.hy()

    def load_w32x1024(self, srd, ptr, sidx, base):
        a = self.a
        a('s_lshl_b32 s4, s%d, 16' % sidx)
        self.srd(srd, ptr, 65536, 's4')
        a('v_lshrrev_b32 v8, 5, v0')
        a('v_lshlrev_b32 v8, 15, v8')
        a('v_and_b32 v9, 31, v0')
        a('v_lshl_add_u32 v8, v9, 4, v8')
        a('s_lshl_b32 s4, s3, 9')
        a('v_add_u32 v8, s4, v8')
        for t in range(16):
            if t % 2 == 0:
                a('s_mov_b32 s4, %d' % ((t >> 1) * 4096))
            a('buffer_load_dwordx4 %s, v8, %s, s4 offen offset:%d nt' % (vr(base + 4 * t, 4), sr(srd, 4), (t & 1) * 2048))

    def load_gu(self, srd, ptr, base):
        a = self.a
        self.srd(srd, ptr, 1024 * 7168)
        for t in range(16):
            if t == 0:
                a('buffer_load_dwordx4 %s, v10, %s, 0 offen nt' % (vr(base, 4), sr(srd, 4)))
            else:
                a('s_mov_b32 s4, %d' % (t * 7168))
                a('buffer_load_dwordx4 %s, v10, %s, s4 offen nt' % (vr(base + 4 * t, 4), sr(srd, 4)))

    def merge_publish(self):
        a = self.a
        a('v_lshrrev_b32 v12, 5, v0')
        a('s_lshl_b32 s4, s3, 1')
        a('v_add_u32 v12, s4, v12')
        a('v_and_b32 v13, 31, v0')
        a('v_mul_u32_u24 v14, %d, v12' % HSTR)
        a('v_lshl_add_u32 v14, v13, 4, v14')
        a('v_add_u32 v14, %d, v14' % L_OP)
        a('v_lshlrev_b32 v15, 3, v12')
        a('v_add_u32 v15, %d, v15' % (L_OP + 8 * HSTR))
        for w in range(4):
            a('ds_read_b64 %s, v15 offset:%d' % (vr(16 + 2 * w, 2), w * WSTR))
        for w in range(4):
            a('ds_read_b128 %s, v14 offset:%d' % (vr(32 + 4 * w, 4), w * WSTR))
        a('s_lshl_b32 s4, s%d, 3' % S_G)
        a('v_add_u32 v24, s4, v12')
        a('v_lshrrev_b32 v25, 3, v13')
        a('v_lshl_add_u32 v25, v24, 2, v25')
        a('s_mov_b32 s5, %d' % ASTR)
        a('v_mul_lo_u32 v25, v25, s5')
        a('v_and_b32 v26, 7, v13')
        a('v_lshl_add_u32 v25, v26, 4, v25')
        a('s_lshl_b32 s5, s%d, 7' % S_C)
        a('s_add_u32 s5, s5, %d' % WS_A)
        a('v_add_u32 v25, s5, v25')
        a('v_lshlrev_b32 v24, 10, v24')
        a('s_lshl_b32 s5, s%d, 4' % S_C)
        a('s_add_u32 s5, s5, %d' % WS_ML)
        a('v_add_u32 v24, s5, v24')
        a('v_mov_b32 v26, s%d' % S_T12)
        a('s_waitcnt lgkmcnt(4)')
        a('v_max3_f32 v27, v16, v18, v20')
        a('v_max_f32 v27, v27, v22')
        for w in range(4):
            a('v_sub_f32 v%d, v%d, v27' % (16 + 2 * w, 16 + 2 * w))
        for w in range(4):
            a('v_mul_f32 v%d, s%d, v%d' % (16 + 2 * w, S_LOG2E, 16 + 2 * w))
        for w in range(4):
            a('v_exp_f32 v%d, v%d' % (16 + 2 * w, 16 + 2 * w))
        a('v_mul_f32 v28, v16, v17')
        for w in range(1, 4):
            a('v_fmac_f32 v28, v%d, v%d' % (16 + 2 * w, 17 + 2 * w))
        a('s_waitcnt lgkmcnt(0)')
        for i in range(4):
            a('v_mul_f32 v%d, v16, v%d' % (32 + i, 32 + i))
        for w in range(1, 4):
            for i in range(4):
                a('v_fmac_f32 v%d, v%d, v%d' % (32 + i, 16 + 2 * w, 32 + 4 * w + i))
        for i in range(4):
            a('v_and_or_b32 v%d, v%d, s%d, v26' % (32 + i, 32 + i, S_M12))
        a('global_store_dwordx4 v25, v[32:35], %s sc1' % sr(P_WS, 2))
        a('v_and_or_b32 v36, v27, s%d, v26' % S_M12)
        a('v_and_or_b32 v37, v28, s%d, v26' % S_M12)
        a('v_mov_b32 v38, v36')
        a('v_mov_b32 v39, v37')
        a('v_cmp_eq_u32 vcc, 0, v13')
        a('s_and_saveexec_b64 s[4:5], vcc')
        a('global_store_dwordx4 v24, v[36:39], %s sc1' % sr(P_WS, 2))
        a('s_mov_b64 exec, -1')

    def vec_from_red(self, vval):
        a = self.a
        a('v_mov_b32_dpp v41, v%d %s' % (vval, self.dpp('quad_perm:[1,0,3,2]')))
        a('v_cvt_pk_bf16_f32 v41, v%d, v41' % vval)
        a('s_lshl_b32 s4, s3, 6')
        a('s_add_u32 s4, s4, %d' % L_VEC)
        a('v_and_b32 v42, 30, v0')
        a('v_lshlrev_b32 v42, 1, v42')
        a('v_add_u32 v42, s4, v42')
        a('v_and_b32 v43, 33, v0')
        a('v_cmp_eq_u32 vcc, 0, v43')
        a('s_and_saveexec_b64 s[6:7], vcc')
        a('ds_write_b32 v42, v41')
        a('s_mov_b64 exec, -1')
        a('v_lshrrev_b32 v42, 5, v0')
        a('v_lshlrev_b32 v42, 5, v42')
        a('v_add_u32 v42, s4, v42')
        a('s_waitcnt lgkmcnt(0)')
        a('ds_read_b128 v[16:19], v42')
        a('ds_read_b128 v[20:23], v42 offset:16')
        a('s_waitcnt lgkmcnt(0)')

    def matvec32_publish(self, wbase, wsbuf, stride, sidx):
        a = self.a
        acc = list(range(32, 40))
        a('v_and_b32 v44, 31, v0')
        a('s_lshl_b32 s4, s3, 5')
        a('v_add_u32 v44, s4, v44')
        a('s_mov_b32 s5, %d' % stride)
        a('v_mul_lo_u32 v44, v44, s5')
        a('v_lshrrev_b32 v45, 5, v0')
        a('v_lshl_add_u32 v44, v45, 4, v44')
        a('s_lshl_b32 s5, s%d, 5' % sidx)
        a('s_add_u32 s5, s5, %d' % wsbuf)
        a('v_add_u32 v44, s5, v44')
        a('v_mov_b32 v45, s%d' % S_T12)
        self.dot_paired(wbase, 8, list(range(16, 24)), acc)
        self.halve([(acc[i], acc[i + 4]) for i in range(4)], 'v_permlane32_swap_b32')
        for i in range(4):
            a('v_and_or_b32 v%d, v%d, s%d, v45' % (acc[i], acc[i], S_M12))
        a('global_store_dwordx4 v44, %s, %s sc1' % (vr(acc[0], 4), sr(P_WS, 2)))

    def reduce_inbox(self, wsbuf, stride, nprod):
        a = self.a
        a('s_mul_i32 s4, s2, %d' % stride)
        a('s_add_u32 s4, s4, %d' % wsbuf)
        a('v_lshlrev_b32 v20, 4, v0')
        a('v_add_u32 v20, s4, v20')
        a('v_mov_b32 v22, s%d' % S_T12)
        a('s_mov_b32 s5, 0xfff')
        nfull = nprod * 32 // 1024
        rem = (nprod * 32) % 1024 // 16
        l = self.poll_begin()
        for t in range(nfull):
            a('global_load_dwordx4 %s, v20, %s offset:%d sc1' % (vr(32 + 4 * t, 4), sr(P_WS, 2), t * 1024))
        if rem:
            t = nfull
            for i in range(4): a('v_mov_b32 v%d, v22' % (32 + 4 * t + i))
            assert rem == 32
            a('s_mov_b32 exec_hi, 0')
            a('global_load_dwordx4 %s, v20, %s offset:%d sc1' % (vr(32 + 4 * t, 4), sr(P_WS, 2), t * 1024))
            a('s_mov_b64 exec, -1')
        a('s_waitcnt vmcnt(0)')
        self.untag(list(range(32, 48)), 22, 23)
        self.poll_end(l, 23, 5)
        for i in range(4):
            a('v_add_f32 v%d, v%d, v%d' % (32 + i, 32 + i, 36 + i))
            a('v_add_f32 v%d, v%d, v%d' % (40 + i, 40 + i, 44 + i))
        for i in range(4):
            a('v_add_f32 v%d, v%d, v%d' % (32 + i, 32 + i, 40 + i))
        self.halve([(32, 34), (33, 35)], 'v_permlane32_swap_b32')
        self.halve([(32, 33)], 'v_permlane16_swap_b32')
        for m in ('row_ror:8', 'row_ror:4', 'row_ror:2'):
            a('v_add_f32_dpp v32, v32, v32 %s' % self.dpp(m))

    def unhalve4(self, r, o):
        a = self.a
        a('v_mov_b32 v%d, v%d' % (o, r))
        a('v_mov_b32 v%d, v%d' % (o + 1, r))
        a('v_permlane16_swap_b32 v%d, v%d' % (o, o + 1))
        a('v_mov_b32 v%d, v%d' % (o + 2, o))
        a('v_mov_b32 v%d, v%d' % (o + 3, o + 1))
        a('v_permlane32_swap_b32 v%d, v%d' % (o, o + 2))
        a('v_permlane32_swap_b32 v%d, v%d' % (o + 1, o + 3))

    def hx(self):
        a = self.a
        a.label('L_hx')
        WB = 192
        self.load_w32x1024(SRD_A, P_WO, 2, WB)
        self.srd(SRD_B, P_X, 2048)
        a('v_and_b32 v50, 1, v0')
        a('v_lshlrev_b32 v50, 2, v50')
        a('v_lshrrev_b32 v51, 5, v0')
        a('v_lshl_add_u32 v50, v51, 1, v50')
        a('v_bfe_u32 v51, v0, 4, 1')
        a('v_add_u32 v50, v50, v51')
        a('s_lshl_b32 s4, s2, 3')
        a('v_add_u32 v50, s4, v50')
        a('v_lshlrev_b32 v50, 1, v50')
        a('buffer_load_ushort v50, v50, %s, 0 offen' % sr(SRD_B, 4))
        a('s_waitcnt vmcnt(0)')
        a('v_lshlrev_b32 v50, 16, v50')
        self.pair_inplace(WB, 8, 52)
        self.stamp(5)
        a('s_barrier')
        self.stamp(6)
        self.merge_publish()
        self.stamp(7)
        a('s_mul_i32 s4, s2, %d' % ASTR)
        a('s_lshl_b32 s5, s3, 11')
        a('s_add_u32 s4, s4, s5')
        a('s_add_u32 s4, s4, %d' % WS_A)
        a('v_lshlrev_b32 v24, 4, v0')
        a('v_add_u32 v25, s4, v24')
        a('s_lshr_b32 s4, s2, 2')
        a('s_lshl_b32 s4, s4, 10')
        a('s_add_u32 s4, s4, %d' % WS_ML)
        a('v_add_u32 v26, s4, v24')
        a('s_lshl_b32 s5, s3, 8')
        a('s_add_u32 s4, s4, s5')
        a('v_lshrrev_b32 v27, 3, v0')
        a('v_lshlrev_b32 v27, 4, v27')
        a('v_add_u32 v27, s4, v27')
        a('v_mov_b32 v28, s%d' % S_T12)
        a('s_mov_b32 s6, 0xfff')
        l = self.poll_begin()
        a('global_load_dwordx4 v[32:35], v26, %s sc1' % sr(P_WS, 2))
        a('global_load_dwordx4 v[36:39], v27, %s sc1' % sr(P_WS, 2))
        a('global_load_dwordx4 v[40:43], v27, %s offset:128 sc1' % sr(P_WS, 2))
        a('global_load_dwordx4 v[44:47], v25, %s sc1' % sr(P_WS, 2))
        a('global_load_dwordx4 v[52:55], v25, %s offset:1024 sc1' % sr(P_WS, 2))
        a('s_waitcnt vmcnt(0)')
        self.untag(list(range(32, 48)) + list(range(52, 56)), 28, 29)
        self.poll_end(l, 29, 6)
        self.stamp(8)
        a('v_mov_b32 v56, v32')
        self.wave_reduce([56], [57], 'v_max_f32')
        a('v_sub_f32 v32, v32, v56')
        a('v_sub_f32 v36, v36, v56')
        a('v_sub_f32 v40, v40, v56')
        for r in (32, 36, 40):
            a('v_mul_f32 v%d, s%d, v%d' % (r, S_LOG2E, r))
        for r in (32, 36, 40):
            a('v_exp_f32 v%d, v%d' % (r, r))
        a('v_mul_f32 v33, v32, v33')
        for i in range(4):
            a('v_mul_f32 v%d, v36, v%d' % (44 + i, 44 + i))
        for i in range(4):
            a('v_fmac_f32 v%d, v40, v%d' % (44 + i, 52 + i))
        self.wave_reduce([33], [57])
        self.halve([(44, 46), (45, 47)], 'v_permlane32_swap_b32')
        self.halve([(44, 45)], 'v_permlane16_swap_b32')
        a('v_add_f32_dpp v44, v44, v44 %s' % self.dpp('row_ror:8'))
        a('v_rcp_f32 v34, v33')
        a('v_lshrrev_b32 v57, 4, v0')
        a('v_and_b32 v58, 7, v0')
        a('v_lshl_add_u32 v57, v57, 3, v58')
        a('v_lshlrev_b32 v57, 4, v57')
        a('s_lshl_b32 s4, s3, 2')
        a('s_add_u32 s4, s4, %d' % L_RED)
        a('v_add_u32 v57, s4, v57')
        a('ds_write_b32 v57, v44')
        a('s_waitcnt lgkmcnt(0)')
        a('s_barrier')
        a('v_and_b32 v57, 31, v0')
        a('v_lshlrev_b32 v57, 4, v57')
        a('v_add_u32 v57, %d, v57' % L_RED)
        a('ds_read_b128 v[36:39], v57')
        a('s_waitcnt lgkmcnt(0)')
        a('v_add_f32 v36, v36, v37')
        a('v_add_f32 v38, v38, v39')
        a('v_add_f32 v36, v36, v38')
        a('v_mul_f32 v40, v36, v34')
        self.vec_from_red(40)
        self.matvec32_publish(WB, WS_B, BSTR, 2)
        self.stamp(9)
        done = self.lab('L_xdone')
        a('s_cmp_eq_u32 s3, 0')
        a('s_cbranch_scc0 %s' % done)
        self.reduce_inbox(WS_B, BSTR, 128)
        self.stamp(10)
        self.rnd_bf16(32, 32)
        a('v_add_f32 v32, v50, v32')
        self.rnd_bf16(51, 32)
        a('v_or_b32 v33, s%d, v51' % S_T16)
        self.unhalve4(33, 36)
        a('s_lshl_b32 s4, s2, 5')
        a('s_add_u32 s4, s4, %d' % WS_C)
        a('v_lshlrev_b32 v20, 4, v0')
        a('v_add_u32 v20, s4, v20')
        a('s_mov_b64 exec, 3')
        a('global_store_dwordx4 v20, v[36:39], %s sc1' % sr(P_WS, 2))
        a('s_mov_b64 exec, -1')
        self.stamp(11)
        self.reduce_inbox(WS_D, DSTR, 112)
        self.stamp(12)
        self.rnd_bf16(32, 32)
        a('v_add_f32 v32, v51, v32')
        self.unhalve4(32, 36)
        a('v_cvt_pk_bf16_f32 v36, v36, v37')
        a('v_cvt_pk_bf16_f32 v37, v38, v39')
        a('s_lshl_b32 s4, s2, 4')
        a('v_lshlrev_b32 v20, 3, v0')
        a('v_add_u32 v20, s4, v20')
        a('s_mov_b64 exec, 3')
        a('global_store_dwordx2 v20, v[36:37], %s' % sr(P_OUT, 2))
        noe = self.lab('L_noe')
        a('s_cmp_eq_u32 s2, 0')
        a('s_cbranch_scc0 %s' % noe)
        a('s_mov_b64 exec, 1')
        a('v_mov_b32 v20, %d' % WS_E)
        a('v_mov_b32 v21, s%d' % S_T)
        a('global_store_dword v20, v21, %s' % sr(P_WS, 2))
        a.label(noe)
        a('s_mov_b64 exec, -1')
        self.stamp(13)
        a.label(done)
        self.dump_stamps()
        a('s_endpgm')

    def hy(self):
        a = self.a
        a.label('L_hy')
        GB, UB, DB = 64, 128, 192
        a('s_and_b32 s4, s2, 7')
        a('s_mul_i32 s4, s4, 14')
        a('s_add_u32 s4, s4, s%d' % S_R)
        a('s_sub_u32 s%d, s4, 16' % S_IDX)
        a('v_lshrrev_b32 v10, 2, v0')
        a('v_lshlrev_b32 v10, 4, v10')
        a('s_lshl_b32 s4, s3, 8')
        a('v_add_u32 v10, s4, v10')
        a('s_movk_i32 s5, 7168')
        a('v_mul_lo_u32 v10, v10, s5')
        a('v_and_b32 v11, 3, v0')
        a('v_lshl_add_u32 v10, v11, 4, v10')
        a('s_lshl_b32 s4, s%d, 6' % S_IDX)
        a('v_add_u32 v10, s4, v10')
        self.load_gu(SRD_A, P_WG, GB)
        a('s_waitcnt vmcnt(0)')
        self.pair_inplace(GB, 8, 52)
        self.stamp(5)
        a('s_barrier')
        self.stamp(6)
        self.merge_publish()
        self.stamp(7)
        self.load_gu(SRD_B, P_WU, UB)
        self.load_w32x1024(SRD_C, P_WD, S_IDX, DB)
        a('s_waitcnt vmcnt(16)')
        self.pair_inplace(UB, 8, 52)
        a('s_waitcnt vmcnt(0)')
        self.pair_inplace(DB, 8, 52)
        self.stamp(8)
        a('v_lshlrev_b32 v2, 4, v0')
        a('v_add_u32 v2, %d, v2' % WS_C)
        a('v_lshrrev_b32 v3, 2, v0')
        a('v_lshlrev_b32 v3, 6, v3')
        a('s_lshl_b32 s4, s3, 10')
        a('s_add_u32 s4, s4, %d' % WS_C)
        a('v_add_u32 v3, s4, v3')
        a('v_mov_b32 v4, s%d' % S_T16)
        a('s_mov_b32 s6, 0xffff')
        l = self.poll_begin()
        for i in range(4):
            a('global_load_dwordx4 %s, v2, %s offset:%d sc1' % (vr(16 + 4 * i, 4), sr(P_WS, 2), i * 1024))
        for i in range(4):
            a('global_load_dwordx4 %s, v3, %s offset:%d sc1' % (vr(32 + 4 * i, 4), sr(P_WS, 2), i * 16))
        a('s_waitcnt vmcnt(0)')
        self.untag(list(range(16, 48)), 4, 5)
        self.poll_end(l, 5, 6)
        self.stamp(9)
        mb, sb, ri = self.layernorm_stats(list(range(16, 32)), 16, 48)
        XP = list(range(8, 16))
        self.normalize_pairs(list(range(32, 48)), mb, sb, ri, XP, 56)
        ag = list(range(16, 24)); au = list(range(24, 32))
        self.dot_paired(GB, 8, XP, ag)
        self.dot_paired(UB, 8, XP, au)
        self.halve([(ag[i], au[i]) for i in range(8)], 'v_permlane32_swap_b32')
        self.halve([(ag[i], ag[i + 4]) for i in range(4)], 'v_permlane16_swap_b32')
        for m in ('row_ror:8', 'row_ror:4'):
            for i in range(4):
                a('v_add_f32_dpp v%d, v%d, v%d %s' % (ag[i], ag[i], ag[i], self.dpp(m)))
        a('v_and_b32 v2, 3, v0')
        a('v_lshlrev_b32 v2, 5, v2')
        a('v_lshrrev_b32 v3, 5, v0')
        a('v_lshl_add_u32 v2, v3, 7, v2')
        a('v_bfe_u32 v3, v0, 4, 1')
        a('v_lshl_add_u32 v2, v3, 4, v2')
        a('s_lshl_b32 s4, s3, 8')
        a('s_add_u32 s4, s4, %d' % L_RED)
        a('v_add_u32 v2, s4, v2')
        a('s_mov_b32 s4, 0x000f000f')
        a('s_mov_b32 s5, 0x000f000f')
        a('s_mov_b64 exec, s[4:5]')
        a('ds_write_b128 v2, %s' % vr(ag[0], 4))
        a('s_mov_b64 exec, -1')
        a('s_waitcnt lgkmcnt(0)')
        a('s_barrier')
        a('v_and_b32 v2, 31, v0')
        a('v_lshlrev_b32 v2, 2, v2')
        a('v_add_u32 v2, %d, v2' % L_RED)
        a('ds_read2_b32 v[32:33], v2 offset0:0 offset1:64')
        a('ds_read2_b32 v[34:35], v2 offset0:128 offset1:192')
        a('ds_read2_b32 v[36:37], v2 offset0:32 offset1:96')
        a('ds_read2_b32 v[38:39], v2 offset0:160 offset1:224')
        a('s_waitcnt lgkmcnt(0)')
        a('v_add_f32 v32, v32, v33')
        a('v_add_f32 v34, v34, v35')
        a('v_add_f32 v36, v36, v37')
        a('v_add_f32 v38, v38, v39')
        a('v_add_f32 v32, v32, v34')
        a('v_add_f32 v36, v36, v38')
        self.rnd_bf16(32, 32)
        self.rnd_bf16(36, 36)
        a('v_mul_f32 v33, v32, v32')
        a('v_mov_b32 v34, 0x%08x' % f2u(0.044715))
        a('v_fma_f32 v33, v33, v34, 1.0')
        a('v_mul_f32 v33, v33, v32')
        a('v_mul_f32 v33, 0x%08x, v33' % f2u(-2.0 * 1.4426950408889634 * 0.7978845608028654))
        a('v_exp_f32 v33, v33')
        a('v_add_f32 v33, 1.0, v33')
        a('v_rcp_f32 v33, v33')
        a('v_mul_f32 v33, v32, v33')
        self.rnd_bf16(33, 33)
        a('v_mul_f32 v40, v33, v36')
        self.vec_from_red(40)
        self.matvec32_publish(DB, WS_D, DSTR, S_IDX)
        self.stamp(10)
        self.dump_stamps()
        a('s_endpgm')

import struct
def f2u(x):
    return struct.unpack('<I', struct.pack('<f', x))[0]

if __name__ == '__main__':
    ap = argparse.ArgumentParser()
    ap.add_argument('-o', default='k1.s')
    ap.add_argument('--diag', action='store_true')
    args = ap.parse_args()
    g = Gen(diag=args.diag)
    txt = g.build()
    hdr = open('sequential_preLN__gqa_block_cached__geglu_ffn__decode.s.ref').read().split('; Override')[0]
    open(args.o, 'w').write(hdr + txt)
    print('wrote', args.o, 'lines', txt.count(chr(10)), 'nops', g.a.nnops)
```

```python
import sys, argparse
sys.path.insert(0, 'gen')
from asmlib import Asm

KNAME = 'sequential_preLN__gqa_block_cached__geglu_ffn__decode_kernel'

WS_E = 0
WS_Q = 0x1000
WS_ML = 0x20000
WS_A = 0x40000;  ASTR = 8192 + 256
WS_B = 0x150000; BSTR = 4096 + 256
WS_C = 0x1E0000
WS_D = 0x200000; DSTR = 4096 + 256
WS_TS = 0x8000000
L_KR = 0
L_QF = 98304
L_QRED = L_QF + 2048
L_CNT = L_QRED + 1024
L_OP = L_CNT + 64
HSTR = 528
WSTR = 8 * HSTR + 64
L_RED = L_OP + 4 * WSTR
L_VEC = L_RED + 1024
L_END = L_VEC + 256
SPIN_LIMIT = 400000

def vr(a, n=1):
    return 'v%d' % a if n == 1 else 'v[%d:%d]' % (a, a + n - 1)
def sr(a, n=1):
    return 's%d' % a if n == 1 else 's[%d:%d]' % (a, a + n - 1)

P_X, P_K, P_V, P_WQ, P_WO, P_BX, P_WG, P_WU = 16, 18, 20, 22, 24, 26, 28, 30
P_WD, P_OUT, P_DBG, P_WS = 32, 34, 36, 38
S_T, S_G, S_C, S_R, S_IDX, S_T8, S_T12, S_T16 = 40, 41, 42, 43, 44, 45, 46, 47
SRD_A, SRD_B, SRD_C = 48, 52, 56
S_SELLO, S_SELHI, S_SCALE, S_LOG2E = 60, 61, 62, 63
S_TS = 64
S_SPIN, S_HI16, S_M8, S_M12, S_M16, S_RING = 96, 97, 98, 99, 100, 101

class Gen:
    def __init__(self, diag=False, ngroups=8, dbgts=False):
        self.a = Asm()
        self.diag = diag
        self.dbgts = dbgts
        self.ng = ngroups
        self.uid = 0
        self.nstamp = 0
    def lab(self, p='L'):
        self.uid += 1
        return '%s_%d' % (p, self.uid)
    def stamp(self, k):
        if self.diag:
            self.a('s_memrealtime %s' % sr(S_TS + 2 * k, 2))
    def dump_stamps(self):
        if not self.diag: return
        a = self.a
        if self.dbgts:
            sk = self.lab('L_nodbg')
            a('s_waitcnt vmcnt(0) lgkmcnt(0)')
            a('s_or_b32 s4, s2, s3')
            a('s_cmp_eq_u32 s4, 0')
            a('s_cbranch_scc0 %s' % sk)
            a('s_mov_b64 exec, 1')
            a('v_mov_b32 v1, 0')
            for i in range(4):
                for k in range(4):
                    a('s_sub_u32 s4, s%d, s%d' % (S_TS + 2 * (4 * i + k), S_TS))
                    a('v_mov_b32 v%d, s4' % (4 + k))
                a('global_store_dwordx4 v1, v[4:7], %s offset:%d' % (sr(P_DBG, 2), 16 * i))
                a('s_nop 1')
            a('s_waitcnt vmcnt(0)')
            a.label(sk)
        a('s_waitcnt vmcnt(0) lgkmcnt(0)')
        a('s_mov_b64 exec, -1')
        a('s_lshl_b32 s4, s2, 3')
        a('s_add_u32 s4, s4, s3')
        a('s_lshl_b32 s4, s4, 7')
        a('s_add_u32 s4, s4, 0x%x' % WS_TS)
        a('v_mov_b32 v1, s4')
        a('s_mov_b64 exec, 1')
        for i in range(8):
            for k in range(4):
                a('v_mov_b32 v%d, s%d' % (4 + k, S_TS + 4 * i + k))
            a('global_store_dwordx4 v1, v[4:7], %s offset:%d' % (sr(P_WS, 2), 16 * i))
            a('s_nop 1')
        a('s_waitcnt vmcnt(0)')

    def srd(self, s, ptr, size, off_sregs=None):
        a = self.a
        if off_sregs is None:
            a('s_mov_b32 s%d, s%d' % (s, ptr))
            a('s_and_b32 s%d, s%d, 0xffff' % (s + 1, ptr + 1))
        else:
            a('s_add_u32 s%d, s%d, %s' % (s, ptr, off_sregs))
            a('s_addc_u32 s%d, s%d, 0' % (s + 1, ptr + 1))
            a('s_and_b32 s%d, s%d, 0xffff' % (s + 1, s + 1))
        a('s_mov_b32 s%d, 0x%x' % (s + 2, size))
        a('s_mov_b32 s%d, 0x20000' % (s + 3))

    def dpp(self, mod):
        return '%s row_mask:0xf bank_mask:0xf' % mod

    def wave_reduce(self, regs, tmp, op='v_add_f32'):
        a = self.a
        for mod in ('quad_perm:[1,0,3,2]', 'quad_perm:[2,3,0,1]', 'row_half_mirror', 'row_mirror'):
            for r in regs:
                a('%s_dpp v%d, v%d, v%d %s' % (op, r, r, r, self.dpp(mod)))
        for sw in ('v_permlane16_swap_b32', 'v_permlane32_swap_b32'):
            for r, t in zip(regs, tmp):
                a('v_mov_b32 v%d, v%d' % (t, r))
            for r, t in zip(regs, tmp):
                a('%s v%d, v%d' % (sw, t, r))
            for r, t in zip(regs, tmp):
                a('%s v%d, v%d, v%d' % (op, r, r, t))

    def halve(self, pairs, sw):
        a = self.a
        for x, y in pairs:
            a('%s v%d, v%d' % (sw, x, y))
        for x, y in pairs:
            a('v_add_f32 v%d, v%d, v%d' % (x, x, y))

    def rnd_bf16(self, dst, src):
        a = self.a
        a('v_cvt_pk_bf16_f32 v%d, v%d, v%d' % (dst, src, src))
        a('v_and_b32 v%d, s%d, v%d' % (dst, S_HI16, dst))

    def unpack(self, lo, hi, src):
        a = self.a
        a('v_lshlrev_b32 v%d, 16, v%d' % (lo, src))
        a('v_and_b32 v%d, s%d, v%d' % (hi, S_HI16, src))

    def poll_begin(self):
        l = self.lab('L_poll')
        self.a('s_mov_b32 s%d, 0' % S_SPIN)
        self.a.label(l)
        return l
    def poll_end(self, l, vbad, smask):
        a = self.a
        ok = self.lab('L_ok')
        a('v_and_b32 v%d, s%d, v%d' % (vbad, smask, vbad))
        a('v_cmp_ne_u32 vcc, 0, v%d' % vbad)
        a('s_cbranch_vccz %s' % ok)
        a('s_add_u32 s%d, s%d, 1' % (S_SPIN, S_SPIN))
        a('s_cmp_lt_u32 s%d, %d' % (S_SPIN, SPIN_LIMIT))
        a('s_cbranch_scc1 %s' % l)
        a('s_branch L_abort')
        a.label(ok)
    def untag(self, regs, vT, vbad):
        a = self.a
        for r in regs:
            a('v_xor_b32 v%d, v%d, v%d' % (r, vT, r))
        first = True
        i = 0
        while i < len(regs):
            if first:
                if len(regs) - i >= 2:
                    a('v_or_b32 v%d, v%d, v%d' % (vbad, regs[i], regs[i + 1])); i += 2
                else:
                    a('v_mov_b32 v%d, v%d' % (vbad, regs[i])); i += 1
                first = False
            elif len(regs) - i >= 2:
                a('v_or3_b32 v%d, v%d, v%d, v%d' % (vbad, vbad, regs[i], regs[i + 1])); i += 2
            else:
                a('v_or_b32 v%d, v%d, v%d' % (vbad, vbad, regs[i])); i += 1

    def layernorm_stats(self, f, n, t0):
        a = self.a
        s, tt, q = t0, t0 + 1, t0 + 2
        mb, sb, ri = t0 + 4, t0 + 5, t0 + 6
        a('v_add_f32 v%d, v%d, v%d' % (s, f[0], f[1]))
        a('v_add_f32 v%d, v%d, v%d' % (q, f[2], f[3]))
        for i in range(4, n, 2):
            a('v_add_f32 v%d, v%d, v%d' % (s, s, f[i]))
            a('v_add_f32 v%d, v%d, v%d' % (q, q, f[i + 1]))
        a('v_add_f32 v%d, v%d, v%d' % (s, s, q))
        self.wave_reduce([s], [tt])
        a('v_mul_f32 v%d, 0x3a800000, v%d' % (s, s))
        a('v_sub_f32 v%d, v%d, v%d' % (tt, f[0], s))
        a('v_mul_f32 v%d, v%d, v%d' % (q, tt, tt))
        for i in range(1, n):
            a('v_sub_f32 v%d, v%d, v%d' % (tt, f[i], s))
            a('v_fmac_f32 v%d, v%d, v%d' % (q, tt, tt))
        self.wave_reduce([q], [tt])
        a('v_mul_f32 v%d, 0x3a800000, v%d' % (q, q))
        self.rnd_bf16(mb, s)
        self.rnd_bf16(q, q)
        a('v_add_f32 v%d, 0x3727c5ac, v%d' % (q, q))
        self.rnd_bf16(q, q)
        a('v_sqrt_f32 v%d, v%d' % (q, q))
        self.rnd_bf16(sb, q)
        a('v_rcp_f32 v%d, v%d' % (ri, sb))
        return mb, sb, ri

    def normalize_pairs(self, f, mb, sb, ri, out, t0):
        a = self.a
        d0, d1, q0, q1 = t0, t0 + 1, t0 + 2, t0 + 3
        for k in range(len(f) // 2):
            a('v_sub_f32 v%d, v%d, v%d' % (d0, f[2 * k], mb))
            a('v_sub_f32 v%d, v%d, v%d' % (d1, f[2 * k + 1], mb))
            a('v_cvt_pk_bf16_f32 v%d, v%d, v%d' % (d1, d0, d1))
            a('v_lshlrev_b32 v%d, 16, v%d' % (d0, d1))
            a('v_and_b32 v%d, s%d, v%d' % (d1, S_HI16, d1))
            a('v_mul_f32 v%d, v%d, v%d' % (q0, d0, ri))
            a('v_mul_f32 v%d, v%d, v%d' % (q1, d1, ri))
            a('v_fma_f32 v%d, -v%d, v%d, v%d' % (d0, q0, sb, d0))
            a('v_fma_f32 v%d, -v%d, v%d, v%d' % (d1, q1, sb, d1))
            a('v_fmac_f32 v%d, v%d, v%d' % (q0, d0, ri))
            a('v_fmac_f32 v%d, v%d, v%d' % (q1, d1, ri))
            a('v_cvt_pk_bf16_f32 v%d, v%d, v%d' % (out[k], q0, q1))

    def pair_inplace(self, base, npairs, tmp):
        a = self.a
        for tp in range(npairs):
            A = base + 8 * tp; B = A + 4
            for i in range(4):
                a('v_perm_b32 v%d, v%d, v%d, s%d' % (tmp + (i & 1), B + i, A + i, S_SELLO))
                a('v_perm_b32 v%d, v%d, v%d, s%d' % (B + i, B + i, A + i, S_SELHI))
                a('v_mov_b32 v%d, v%d' % (A + i, tmp + (i & 1)))

    def dot_paired(self, base, npairs, xp, acc):
        a = self.a
        for tp in range(npairs):
            A = base + 8 * tp; B = A + 4
            for i in range(4):
                c0 = '0' if tp == 0 else 'v%d' % acc[2 * i]
                c1 = '0' if tp == 0 else 'v%d' % acc[2 * i + 1]
                a('v_dot2_f32_bf16 v%d, v%d, v%d, %s' % (acc[2 * i], A + i, xp[tp], c0))
                a('v_dot2_f32_bf16 v%d, v%d, v%d, %s' % (acc[2 * i + 1], B + i, xp[tp], c1))

    def build(self):
        a = self.a
        nthreads = 512
        a.raw('; @launch grid=(256,1,1) block=(%d,1,1) lds=%d' % (nthreads, L_END))
        a.raw('.amdgcn_target "amdgcn-amd-amdhsa--gfx950"')
        a.raw('.text')
        a.raw('.globl %s\n.p2align 8\n.type %s,@function\n%s:' % (KNAME, KNAME, KNAME))
        a('s_cmp_ge_u32 s2, 256')
        a('s_cbranch_scc1 L_exit')
        if self.diag:
            for k in range(16): a('s_mov_b64 %s, 0' % sr(S_TS + 2 * k, 2))
        self.stamp(0)
        a('s_load_dwordx16 s[16:31], s[0:1], 0')
        a('s_load_dwordx8 s[32:39], s[0:1], 64')
        a('v_lshrrev_b32 v1, 6, v0')
        a('v_and_b32 v0, 63, v0')
        a('v_readfirstlane_b32 s3, v1')
        a('s_lshr_b32 s%d, s2, 3' % S_R)
        a('s_and_b32 s%d, s%d, 3' % (S_G, S_R))
        a('s_lshr_b32 s4, s%d, 2' % S_R)
        a('s_lshl_b32 s4, s4, 3')
        a('s_and_b32 s5, s2, 7')
        a('s_add_u32 s%d, s4, s5' % S_C)
        a('s_mov_b32 s%d, 0x05040100' % S_SELLO)
        a('s_mov_b32 s%d, 0x07060302' % S_SELHI)
        a('s_mov_b32 s%d, 0x3db504f3' % S_SCALE)
        a('s_mov_b32 s%d, 0x3fb8aa3b' % S_LOG2E)
        a('s_mov_b32 s%d, 0xffff0000' % S_HI16)
        a('s_mov_b32 s%d, 0xffffff00' % S_M8)
        a('s_mov_b32 s%d, 0xfffff000' % S_M12)
        a('s_waitcnt lgkmcnt(0)')
        a('s_cmp_ge_u32 s3, 4')
        a('s_cbranch_scc1 L_swave')
        self.hwave()
        self.swave()
        a.label('L_abort')
        if self.diag:
            self.dump_stamps()
        a('s_endpgm')
        a.label('L_exit')
        a('s_endpgm')
        a.raw('.section .rodata,"a"\n.p2align 6\n.amdhsa_kernel %s' % KNAME)
        a.raw('  .amdhsa_next_free_vgpr 256\n  .amdhsa_next_free_sgpr 102\n  .amdhsa_accum_offset 256')
        a.raw('  .amdhsa_group_segment_fixed_size 0\n  .amdhsa_kernarg_size 96\n  .amdhsa_user_sgpr_count 2')
        a.raw('  .amdhsa_user_sgpr_kernarg_segment_ptr 1\n  .amdhsa_system_sgpr_workgroup_id_x 1\n.end_amdhsa_kernel')
        return a.text()

    def swave(self):
        a = self.a
        ng = self.ng
        a.label('L_swave')
        vKsrc = [2, 3, 4, 5]; vVsrc = 6; vKrd = [7, 8, 9, 10]
        vM, vL, vAl, vNM = 12, 13, 14, 11
        Q = 16; D = 32; S = 40; P = 48; T = 52
        ACC = 64; KT = 96; VT = 128; VR = 160
        a('s_sub_u32 s3, s3, 4')
        a('s_lshl_b32 s4, s%d, 24' % S_G)
        a('s_mul_i32 s5, s%d, %d' % (S_C, 4 * ng * 32 * 256))
        a('s_add_u32 s4, s4, s5')
        a('s_mul_i32 s5, s3, %d' % (ng * 32 * 256))
        a('s_add_u32 s4, s4, s5')
        self.srd(SRD_A, P_K, ng * 8192, 's4')
        self.srd(SRD_B, P_V, ng * 8192, 's4')
        a('s_mul_i32 s%d, s3, 24576' % S_RING)
        a('v_lshrrev_b32 v14, 4, v0')
        a('v_and_b32 v15, 15, v0')
        for i in range(4):
            a('v_lshlrev_b32 v11, 2, v14')
            a('v_add_u32 v11, %d, v11' % i)
            a('v_xor_b32 v11, v11, v15')
            a('v_lshlrev_b32 v11, 4, v11')
            a('v_lshl_add_u32 v%d, v14, 8, v11' % vKsrc[i])
        a('v_lshlrev_b32 v%d, 4, v0' % vVsrc)
        a('v_and_b32 v16, 3, v15')
        a('v_lshrrev_b32 v17, 2, v15')
        a('v_lshl_add_u32 v18, v16, 2, v17')
        a('v_lshlrev_b32 v18, 8, v18')
        a('v_add_u32 v18, s%d, v18' % S_RING)
        a('v_xor_b32 v19, v14, v16')
        for s in range(4):
            a('v_xor_b32 v20, %d, v17' % s)
            a('v_lshl_add_u32 v20, v20, 2, v19')
            a('v_lshl_add_u32 v%d, v20, 4, v18' % vKrd[s])
        a('v_and_b32 v21, 7, v15')
        a('v_lshlrev_b32 v21, 8, v21')
        a('v_lshl_add_u32 v21, v14, 4, v21')
        a('v_add_u32 v21, %d, v21' % L_QF)
        a('s_mul_i32 s6, s3, %d' % WSTR)
        a('s_add_u32 s6, s6, %d' % L_OP)
        a('v_mul_u32_u24 v22, %d, v15' % HSTR)
        a('v_lshl_add_u32 v22, v14, 7, v22')
        a('v_add_u32 v1, s6, v22')
        a('v_mov_b32 v15, v21')
        a('s_barrier')
        vm = []
        def issueK(i):
            slot = i % 3
            a('s_mov_b32 s4, %d' % (i * 8192))
            a('s_mov_b32 s5, %d' % (i * 8192 + 4096))
            a('s_add_u32 m0, s%d, %d' % (S_RING, slot * 8192))
            for ii in range(4):
                a('buffer_load_dwordx4 v%d, %s, s4 offen offset:%d nt lds' % (vKsrc[ii], sr(SRD_A, 4), ii * 1024))
                vm.append(('K', i))
            a('s_add_u32 m0, s%d, %d' % (S_RING, slot * 8192 + 4096))
            for ii in range(4):
                a('buffer_load_dwordx4 v%d, %s, s5 offen offset:%d nt lds' % (vKsrc[ii], sr(SRD_A, 4), ii * 1024))
                vm.append(('K', i))
        def issueV(i):
            slot = i % 3
            a('s_mov_b32 s6, %d' % (i * 8192))
            a('s_mov_b32 s7, %d' % (i * 8192 + 4096))
            for t in range(8):
                a('buffer_load_dwordx4 %s, v%d, %s, s%d offen offset:%d nt' % (
                    vr(VR + slot * 32 + 4 * t, 4), vVsrc, sr(SRD_B, 4), 6 if t < 4 else 7, (t & 3) * 1024))
                vm.append(('V', i))
        def waitvm(tag):
            idx = max(k for k, x in enumerate(vm) if x == tag)
            n = len(vm) - 1 - idx
            a('s_waitcnt vmcnt(%d)' % n)
            del vm[:idx + 1]
        for i in range(min(3, ng)):
            issueK(i); issueV(i)
        self.stamp(1)
        a('s_barrier')
        self.stamp(2)
        for s in range(4):
            a('ds_read_b128 %s, v15 offset:%d' % (vr(Q + 4 * s, 4), s * 64))
        a('v_mov_b32 v%d, 0xff800000' % vM)
        a('v_mov_b32 v%d, 0' % vL)
        for i in range(32):
            a('v_mov_b32 v%d, 0' % (ACC + i))
        a('s_waitcnt lgkmcnt(0)')
        for i in range(ng):
            slot = i % 3
            waitvm(('K', i))
            for u in range(2):
                for s in range(4):
                    a('ds_read_b128 %s, v%d offset:%d' % (vr(KT + 16 * u + 4 * s, 4), vKrd[s], slot * 8192 + u * 4096))
            a('s_waitcnt lgkmcnt(4)')
            for s in range(4):
                a('v_mfma_f32_16x16x32_bf16 %s, %s, %s, %s' % (vr(D, 4), vr(KT + 4 * s, 4), vr(Q + 4 * s, 4), '0' if s == 0 else vr(D, 4)))
            a('s_waitcnt lgkmcnt(0)')
            for s in range(4):
                a('v_mfma_f32_16x16x32_bf16 %s, %s, %s, %s' % (vr(D + 4, 4), vr(KT + 16 + 4 * s, 4), vr(Q + 4 * s, 4), '0' if s == 0 else vr(D + 4, 4)))
            if i + 3 < ng: issueK(i + 3)
            for k in range(4):
                a('v_cvt_pk_bf16_f32 v%d, v%d, v%d' % (T + k, D + 2 * k, D + 2 * k + 1))
            for k in range(4):
                self.unpack(S + 2 * k, S + 2 * k + 1, T + k)
            for k in range(8):
                a('v_mul_f32 v%d, s%d, v%d' % (S + k, S_SCALE, S + k))
            for k in range(4):
                a('v_cvt_pk_bf16_f32 v%d, v%d, v%d' % (T + k, S + 2 * k, S + 2 * k + 1))
            for k in range(4):
                self.unpack(S + 2 * k, S + 2 * k + 1, T + k)
            a('v_max3_f32 v%d, v%d, v%d, v%d' % (T, S, S + 1, S + 2))
            a('v_max3_f32 v%d, v%d, v%d, v%d' % (T + 1, S + 3, S + 4, S + 5))
            a('v_max3_f32 v%d, v%d, v%d, v%d' % (T, T, S + 6, S + 7))
            a('v_max3_f32 v%d, v%d, v%d, v%d' % (T, T, T + 1, vM))
            for sw in ('v_permlane16_swap_b32', 'v_permlane32_swap_b32'):
                a('v_mov_b32 v%d, v%d' % (T + 1, T))
                a('%s v%d, v%d' % (sw, T + 1, T))
                a('v_max_f32 v%d, v%d, v%d' % (T, T, T + 1))
            a('v_sub_f32 v%d, v%d, v%d' % (T + 1, vM, T))
            a('v_mul_f32 v%d, s%d, v%d' % (T + 1, S_LOG2E, T + 1))
            a('v_mul_f32 v%d, s%d, v%d' % (vNM, S_LOG2E, T))
            a('v_exp_f32 v%d, v%d' % (vAl, T + 1))
            a('v_mov_b32 v%d, v%d' % (vM, T))
            for k in range(8):
                a('v_fma_f32 v%d, v%d, s%d, -v%d' % (S + k, S + k, S_LOG2E, vNM))
            for k in range(8):
                a('v_exp_f32 v%d, v%d' % (S + k, S + k))
            a('v_add_f32 v%d, v%d, v%d' % (T, S, S + 1))
            a('v_add_f32 v%d, v%d, v%d' % (T + 1, S + 2, S + 3))
            a('v_add_f32 v%d, v%d, v%d' % (T + 2, S + 4, S + 5))
            a('v_add_f32 v%d, v%d, v%d' % (T + 3, S + 6, S + 7))
            a('v_add_f32 v%d, v%d, v%d' % (T, T, T + 1))
            a('v_add_f32 v%d, v%d, v%d' % (T + 2, T + 2, T + 3))
            a('v_add_f32 v%d, v%d, v%d' % (T, T, T + 2))
            a('v_fma_f32 v%d, v%d, v%d, v%d' % (vL, vL, vAl, T))
            for k in range(4):
                a('v_cvt_pk_bf16_f32 v%d, v%d, v%d' % (P + k, S + 2 * k, S + 2 * k + 1))
            if i > 0:
                for k in range(16):
                    a('v_pk_mul_f32 %s, %s, %s op_sel_hi:[1,0]' % (vr(ACC + 2 * k, 2), vr(ACC + 2 * k, 2), vr(vAl, 2)))
            waitvm(('V', i))
            R = VR + slot * 32
            for j in range(8):
                for rho in range(4):
                    a('v_perm_b32 v%d, v%d, v%d, s%d' % (VT + 4 * j + rho, R + 4 * (2 * rho + 1) + (j >> 1), R + 4 * (2 * rho) + (j >> 1), S_SELHI if (j & 1) else S_SELLO))
            if i + 3 < ng: issueV(i + 3)
            for j in range(8):
                a('v_mfma_f32_16x16x32_bf16 %s, %s, %s, %s' % (vr(ACC + 4 * j, 4), vr(VT + 4 * j, 4), vr(P, 4), vr(ACC + 4 * j, 4)))
            if i < 9: self.stamp(3 + i)
        for sw in ('v_permlane16_swap_b32', 'v_permlane32_swap_b32'):
            a('v_mov_b32 v%d, v%d' % (T + 1, vL))
            a('%s v%d, v%d' % (sw, T + 1, vL))
            a('v_add_f32 v%d, v%d, v%d' % (vL, vL, T + 1))
        a('v_and_b32 v%d, 8, v0' % T)
        a('v_cmp_eq_u32 vcc, 0, v%d' % T)
        a('s_and_saveexec_b64 s[4:5], vcc')
        for j in range(8):
            a('ds_write_b128 v1, %s offset:%d' % (vr(ACC + 4 * j, 4), j * 16))
        a('s_mov_b64 exec, 0xff')
        a('s_mul_i32 s6, s3, %d' % WSTR)
        a('s_add_u32 s6, s6, %d' % (L_OP + 8 * HSTR))
        a('v_lshlrev_b32 v%d, 3, v0' % T)
        a('v_add_u32 v%d, s6, v%d' % (T, T))
        a('ds_write_b64 v%d, %s' % (T, vr(vM, 2)))
        a('s_mov_b64 exec, -1')
        a('s_waitcnt lgkmcnt(0)')
        self.stamp(12)
        a('s_barrier')
        if self.diag:
            a('s_add_u32 s3, s3, 4')
            self.dump_stamps()
        a('s_endpgm')

    def hwave(self):
        a = self.a
        W0 = 64
        a('v_mov_b32 v6, %d' % L_CNT)
        a('v_mov_b32 v7, 0')
        a('ds_write_b32 v6, v7')
        a('s_waitcnt lgkmcnt(0)')
        a('s_load_dword s%d, %s, %d' % (S_T, sr(P_WS, 2), WS_E))
        self.srd(SRD_A, P_WQ, 0x800000)
        self.srd(SRD_B, P_X, 2048)
        a('s_lshr_b32 s8, s2, 2')
        a('s_and_b32 s9, s2, 3')
        a('s_lshl_b32 s10, s9, 8')
        a('s_lshl_b32 s11, s3, 6')
        a('s_add_u32 s10, s10, s11')
        a('v_lshlrev_b32 v2, 4, v0')
        a('v_lshrrev_b32 v3, 3, v0')
        a('v_lshlrev_b32 v4, 4, v3')
        a('s_lshl_b32 s5, s10, 1')
        a('buffer_load_dwordx4 v[16:19], v2, %s, 0 offen' % sr(SRD_B, 4))
        a('buffer_load_dwordx4 v[20:23], v2, %s, 0 offen offset:1024' % sr(SRD_B, 4))
        a('buffer_load_dwordx4 v[24:27], v4, %s, s5 offen' % sr(SRD_B, 4))
        a('v_and_b32 v5, 7, v0')
        a('v_lshlrev_b32 v5, 4, v5')
        a('v_lshl_add_u32 v5, v3, 16, v5')
        a('s_lshl_b32 s4, s10, 13')
        a('s_lshl_b32 s6, s8, 7')
        a('s_add_u32 s4, s4, s6')
        for t in range(8):
            a('buffer_load_dwordx4 %s, v5, %s, s4 offen nt' % (vr(W0 + 4 * t, 4), sr(SRD_A, 4)))
            if t < 7: a('s_add_u32 s4, s4, 8192')
        a('s_barrier')
        a('s_waitcnt lgkmcnt(0)')
        a('s_add_u32 s%d, s%d, 1' % (S_T, S_T))
        a('s_and_b32 s%d, s%d, 0xff' % (S_T8, S_T))
        a('s_and_b32 s%d, s%d, 0xfff' % (S_T12, S_T))
        a('s_and_b32 s%d, s%d, 0xffff' % (S_T16, S_T))
        a('s_waitcnt vmcnt(8)')
        F = list(range(32, 48))
        for k in range(8):
            self.unpack(32 + 2 * k, 33 + 2 * k, 16 + k)
        mb, sb, ri = self.layernorm_stats(F, 16, 48)
        for k in range(4):
            self.unpack(32 + 2 * k, 33 + 2 * k, 24 + k)
        XP = [16, 17, 18, 19]
        self.normalize_pairs(list(range(32, 40)), mb, sb, ri, XP, 56)
        self.stamp(1)
        a('s_waitcnt vmcnt(0)')
        self.stamp(2)
        acc = list(range(32, 40))
        for tp in range(4):
            A = W0 + 8 * tp; B = A + 4
            for i in range(4):
                a('v_perm_b32 v%d, v%d, v%d, s%d' % (20 + 2 * (i & 1), B + i, A + i, S_SELLO))
                a('v_perm_b32 v%d, v%d, v%d, s%d' % (21 + 2 * (i & 1), B + i, A + i, S_SELHI))
                c0 = '0' if tp == 0 else 'v%d' % acc[2 * i]
                c1 = '0' if tp == 0 else 'v%d' % acc[2 * i + 1]
                a('v_dot2_f32_bf16 v%d, v%d, v%d, %s' % (acc[2 * i], 20 + 2 * (i & 1), XP[tp], c0))
                a('v_dot2_f32_bf16 v%d, v%d, v%d, %s' % (acc[2 * i + 1], 21 + 2 * (i & 1), XP[tp], c1))
        self.halve([(acc[i], acc[i + 4]) for i in range(4)], 'v_permlane32_swap_b32')
        self.halve([(acc[i], acc[i + 2]) for i in range(2)], 'v_permlane16_swap_b32')
        for i in range(2):
            a('v_add_f32_dpp v%d, v%d, v%d %s' % (acc[i], acc[i], acc[i], self.dpp('row_ror:8')))
        a('v_and_b32 v20, 7, v0')
        a('v_lshlrev_b32 v20, 5, v20')
        a('v_lshrrev_b32 v21, 5, v0')
        a('v_lshl_add_u32 v20, v21, 4, v20')
        a('v_bfe_u32 v21, v0, 4, 1')
        a('v_lshl_add_u32 v20, v21, 3, v20')
        a('s_lshl_b32 s4, s3, 8')
        a('s_add_u32 s4, s4, %d' % L_QRED)
        a('v_add_u32 v20, s4, v20')
        a('ds_write_b64 v20, %s' % vr(acc[0], 2))
        a('s_waitcnt lgkmcnt(0)')
        a('s_mov_b64 exec, 1')
        a('v_mov_b32 v7, 1')
        a('ds_add_rtn_u32 v8, v6, v7')
        a('s_waitcnt lgkmcnt(0)')
        a('v_readfirstlane_b32 s4, v8')
        a('s_mov_b64 exec, -1')
        notlast = self.lab('L_qnl')
        a('s_cmp_eq_u32 s4, 3')
        a('s_cbranch_scc0 %s' % notlast)
        a('s_mov_b64 exec, 0xffff')
        a('v_add_u32 v20, %d, v2' % L_QRED)
        for w in range(4):
            a('ds_read_b128 %s, v20 offset:%d' % (vr(32 + 4 * w, 4), w * 256))
        a('s_lshr_b32 s4, s8, 4')
        a('s_lshl_b32 s4, s4, 14')
        a('s_lshl_b32 s5, s9, 12')
        a('s_add_u32 s4, s4, s5')
        a('s_and_b32 s5, s8, 15')
        a('s_lshl_b32 s5, s5, 8')
        a('s_add_u32 s4, s4, s5')
        a('s_add_u32 s4, s4, %d' % WS_Q)
        a('v_add_u32 v21, s4, v2')
        a('v_mov_b32 v22, s%d' % S_T8)
        a('s_waitcnt lgkmcnt(0)')
        for i in range(4):
            a('v_add_f32 v%d, v%d, v%d' % (32 + i, 32 + i, 36 + i))
            a('v_add_f32 v%d, v%d, v%d' % (40 + i, 40 + i, 44 + i))
        for i in range(4):
            a('v_add_f32 v%d, v%d, v%d' % (32 + i, 32 + i, 40 + i))
        for i in range(4):
            a('v_and_or_b32 v%d, v%d, s%d, v22' % (32 + i, 32 + i, S_M8))
        a('global_store_dwordx4 v21, v[32:35], %s sc1' % sr(P_WS, 2))
        a('s_mov_b64 exec, -1')
        a.label(notlast)
        self.stamp(3)
        a('s_lshl_b32 s4, s%d, 14' % S_G)
        a('s_lshl_b32 s5, s3, 10')
        a('s_add_u32 s4, s4, s5')
        a('s_add_u32 s4, s4, %d' % (WS_Q + 4096))
        a('v_add_u32 v20, s4, v2')
        a('v_add_u32 v21, 8192, v20')
        a('v_mov_b32 v22, s%d' % S_T8)
        a('s_mov_b32 s4, 0xff')
        l = self.poll_begin()
        a('global_load_dwordx4 v[32:35], v20, %s offset:-4096 sc1' % sr(P_WS, 2))
        a('global_load_dwordx4 v[36:39], v20, %s sc1' % sr(P_WS, 2))
        a('global_load_dwordx4 v[40:43], v21, %s offset:-4096 sc1' % sr(P_WS, 2))
        a('global_load_dwordx4 v[44:47], v21, %s sc1' % sr(P_WS, 2))
        a('s_waitcnt vmcnt(0)')
        self.untag(list(range(32, 48)), 22, 23)
        self.poll_end(l, 23, 4)
        for i in range(4):
            a('v_add_f32 v%d, v%d, v%d' % (32 + i, 32 + i, 36 + i))
            a('v_add_f32 v%d, v%d, v%d' % (40 + i, 40 + i, 44 + i))
        for i in range(4):
            a('v_add_f32 v%d, v%d, v%d' % (32 + i, 32 + i, 40 + i))
        a('v_cvt_pk_bf16_f32 v32, v32, v33')
        a('v_cvt_pk_bf16_f32 v33, v34, v35')
        a('s_lshl_b32 s4, s3, 9')
        a('s_add_u32 s4, s4, %d' % L_QF)
        a('v_lshlrev_b32 v20, 3, v0')
        a('v_add_u32 v20, s4, v20')
        a('ds_write_b64 v20, v[32:33]')
        a('s_waitcnt lgkmcnt(0)')
        a('s_barrier')
        self.stamp(4)
        a('s_cmp_lt_u32 s2, 128')
        a('s_cbranch_scc1 L_hx')
        a('s_cmp_lt_u32 s2, 240')
        a('s_cbranch_scc1 L_hy')
        a('s_barrier')
        self.stamp(6)
        self.merge_publish()
        self.stamp(7)
        self.dump_stamps()
        a('s_endpgm')
        self.hx()
        self.hy()

    def load_w32x1024(self, srd, ptr, sidx, base):
        a = self.a
        a('s_lshl_b32 s4, s%d, 16' % sidx)
        self.srd(srd, ptr, 65536, 's4')
        a('v_lshrrev_b32 v8, 5, v0')
        a('v_lshlrev_b32 v8, 15, v8')
        a('v_and_b32 v9, 31, v0')
        a('v_lshl_add_u32 v8, v9, 4, v8')
        a('s_lshl_b32 s4, s3, 9')
        a('v_add_u32 v8, s4, v8')
        for t in range(16):
            if t % 2 == 0:
                a('s_mov_b32 s4, %d' % ((t >> 1) * 4096))
            a('buffer_load_dwordx4 %s, v8, %s, s4 offen offset:%d nt' % (vr(base + 4 * t, 4), sr(srd, 4), (t & 1) * 2048))

    def load_gu(self, srd, ptr, base):
        a = self.a
        self.srd(srd, ptr, 1024 * 7168)
        for t in range(16):
            if t == 0:
                a('buffer_load_dwordx4 %s, v10, %s, 0 offen nt' % (vr(base, 4), sr(srd, 4)))
            else:
                a('s_mov_b32 s4, %d' % (t * 7168))
                a('buffer_load_dwordx4 %s, v10, %s, s4 offen nt' % (vr(base + 4 * t, 4), sr(srd, 4)))

    def merge_publish(self):
        a = self.a
        a('v_lshrrev_b32 v12, 5, v0')
        a('s_lshl_b32 s4, s3, 1')
        a('v_add_u32 v12, s4, v12')
        a('v_and_b32 v13, 31, v0')
        a('v_mul_u32_u24 v14, %d, v12' % HSTR)
        a('v_lshl_add_u32 v14, v13, 4, v14')
        a('v_add_u32 v14, %d, v14' % L_OP)
        a('v_lshlrev_b32 v15, 3, v12')
        a('v_add_u32 v15, %d, v15' % (L_OP + 8 * HSTR))
        for w in range(4):
            a('ds_read_b64 %s, v15 offset:%d' % (vr(16 + 2 * w, 2), w * WSTR))
        for w in range(4):
            a('ds_read_b128 %s, v14 offset:%d' % (vr(32 + 4 * w, 4), w * WSTR))
        a('s_lshl_b32 s4, s%d, 3' % S_G)
        a('v_add_u32 v24, s4, v12')
        a('v_lshrrev_b32 v25, 3, v13')
        a('v_lshl_add_u32 v25, v24, 2, v25')
        a('s_mov_b32 s5, %d' % ASTR)
        a('v_mul_lo_u32 v25, v25, s5')
        a('v_and_b32 v26, 7, v13')
        a('v_lshl_add_u32 v25, v26, 4, v25')
        a('s_lshl_b32 s5, s%d, 7' % S_C)
        a('s_add_u32 s5, s5, %d' % WS_A)
        a('v_add_u32 v25, s5, v25')
        a('v_lshlrev_b32 v24, 10, v24')
        a('s_lshl_b32 s5, s%d, 4' % S_C)
        a('s_add_u32 s5, s5, %d' % WS_ML)
        a('v_add_u32 v24, s5, v24')
        a('v_mov_b32 v26, s%d' % S_T12)
        a('s_waitcnt lgkmcnt(4)')
        a('v_max3_f32 v27, v16, v18, v20')
        a('v_max_f32 v27, v27, v22')
        for w in range(4):
            a('v_sub_f32 v%d, v%d, v27' % (16 + 2 * w, 16 + 2 * w))
        for w in range(4):
            a('v_mul_f32 v%d, s%d, v%d' % (16 + 2 * w, S_LOG2E, 16 + 2 * w))
        for w in range(4):
            a('v_exp_f32 v%d, v%d' % (16 + 2 * w, 16 + 2 * w))
        a('v_mul_f32 v28, v16, v17')
        for w in range(1, 4):
            a('v_fmac_f32 v28, v%d, v%d' % (16 + 2 * w, 17 + 2 * w))
        a('s_waitcnt lgkmcnt(0)')
        for i in range(4):
            a('v_mul_f32 v%d, v16, v%d' % (32 + i, 32 + i))
        for w in range(1, 4):
            for i in range(4):
                a('v_fmac_f32 v%d, v%d, v%d' % (32 + i, 16 + 2 * w, 32 + 4 * w + i))
        for i in range(4):
            a('v_and_or_b32 v%d, v%d, s%d, v26' % (32 + i, 32 + i, S_M12))
        a('global_store_dwordx4 v25, v[32:35], %s sc1' % sr(P_WS, 2))
        a('v_and_or_b32 v36, v27, s%d, v26' % S_M12)
        a('v_and_or_b32 v37, v28, s%d, v26' % S_M12)
        a('v_mov_b32 v38, v36')
        a('v_mov_b32 v39, v37')
        a('v_cmp_eq_u32 vcc, 0, v13')
        a('s_and_saveexec_b64 s[4:5], vcc')
        a('global_store_dwordx4 v24, v[36:39], %s sc1' % sr(P_WS, 2))
        a('s_mov_b64 exec, -1')

    def vec_from_red(self, vval):
        a = self.a
        a('v_mov_b32_dpp v41, v%d %s' % (vval, self.dpp('quad_perm:[1,0,3,2]')))
        a('v_cvt_pk_bf16_f32 v41, v%d, v41' % vval)
        a('s_lshl_b32 s4, s3, 6')
        a('s_add_u32 s4, s4, %d' % L_VEC)
        a('v_and_b32 v42, 30, v0')
        a('v_lshlrev_b32 v42, 1, v42')
        a('v_add_u32 v42, s4, v42')
        a('v_and_b32 v43, 33, v0')
        a('v_cmp_eq_u32 vcc, 0, v43')
        a('s_and_saveexec_b64 s[6:7], vcc')
        a('ds_write_b32 v42, v41')
        a('s_mov_b64 exec, -1')
        a('v_lshrrev_b32 v42, 5, v0')
        a('v_lshlrev_b32 v42, 5, v42')
        a('v_add_u32 v42, s4, v42')
        a('s_waitcnt lgkmcnt(0)')
        a('ds_read_b128 v[16:19], v42')
        a('ds_read_b128 v[20:23], v42 offset:16')
        a('s_waitcnt lgkmcnt(0)')

    def matvec32_publish(self, wbase, wsbuf, stride, sidx):
        a = self.a
        acc = list(range(32, 40))
        a('v_and_b32 v44, 31, v0')
        a('s_lshl_b32 s4, s3, 5')
        a('v_add_u32 v44, s4, v44')
        a('s_mov_b32 s5, %d' % stride)
        a('v_mul_lo_u32 v44, v44, s5')
        a('v_lshrrev_b32 v45, 5, v0')
        a('v_lshl_add_u32 v44, v45, 4, v44')
        a('s_lshl_b32 s5, s%d, 5' % sidx)
        a('s_add_u32 s5, s5, %d' % wsbuf)
        a('v_add_u32 v44, s5, v44')
        a('v_mov_b32 v45, s%d' % S_T12)
        self.dot_paired(wbase, 8, list(range(16, 24)), acc)
        self.halve([(acc[i], acc[i + 4]) for i in range(4)], 'v_permlane32_swap_b32')
        for i in range(4):
            a('v_and_or_b32 v%d, v%d, s%d, v45' % (acc[i], acc[i], S_M12))
        a('global_store_dwordx4 v44, %s, %s sc1' % (vr(acc[0], 4), sr(P_WS, 2)))

    def reduce_inbox(self, wsbuf, stride, nprod):
        a = self.a
        a('s_mul_i32 s4, s2, %d' % stride)
        a('s_add_u32 s4, s4, %d' % wsbuf)
        a('v_lshlrev_b32 v20, 4, v0')
        a('v_add_u32 v20, s4, v20')
        a('v_mov_b32 v22, s%d' % S_T12)
        a('s_mov_b32 s5, 0xfff')
        nfull = nprod * 32 // 1024
        rem = (nprod * 32) % 1024 // 16
        l = self.poll_begin()
        for t in range(nfull):
            a('global_load_dwordx4 %s, v20, %s offset:%d sc1' % (vr(32 + 4 * t, 4), sr(P_WS, 2), t * 1024))
        if rem:
            t = nfull
            for i in range(4): a('v_mov_b32 v%d, v22' % (32 + 4 * t + i))
            assert rem == 32
            a('s_mov_b32 exec_hi, 0')
            a('global_load_dwordx4 %s, v20, %s offset:%d sc1' % (vr(32 + 4 * t, 4), sr(P_WS, 2), t * 1024))
            a('s_mov_b64 exec, -1')
        a('s_waitcnt vmcnt(0)')
        self.untag(list(range(32, 48)), 22, 23)
        self.poll_end(l, 23, 5)
        for i in range(4):
            a('v_add_f32 v%d, v%d, v%d' % (32 + i, 32 + i, 36 + i))
            a('v_add_f32 v%d, v%d, v%d' % (40 + i, 40 + i, 44 + i))
        for i in range(4):
            a('v_add_f32 v%d, v%d, v%d' % (32 + i, 32 + i, 40 + i))
        self.halve([(32, 34), (33, 35)], 'v_permlane32_swap_b32')
        self.halve([(32, 33)], 'v_permlane16_swap_b32')
        for m in ('row_ror:8', 'row_ror:4', 'row_ror:2'):
            a('v_add_f32_dpp v32, v32, v32 %s' % self.dpp(m))

    def unhalve4(self, r, o):
        a = self.a
        a('v_mov_b32 v%d, v%d' % (o, r))
        a('v_mov_b32 v%d, v%d' % (o + 1, r))
        a('v_permlane16_swap_b32 v%d, v%d' % (o, o + 1))
        a('v_mov_b32 v%d, v%d' % (o + 2, o))
        a('v_mov_b32 v%d, v%d' % (o + 3, o + 1))
        a('v_permlane32_swap_b32 v%d, v%d' % (o, o + 2))
        a('v_permlane32_swap_b32 v%d, v%d' % (o + 1, o + 3))

    def hx(self):
        a = self.a
        a.label('L_hx')
        WB = 192
        self.load_w32x1024(SRD_A, P_WO, 2, WB)
        self.srd(SRD_B, P_X, 2048)
        a('v_and_b32 v50, 1, v0')
        a('v_lshlrev_b32 v50, 2, v50')
        a('v_lshrrev_b32 v51, 5, v0')
        a('v_lshl_add_u32 v50, v51, 1, v50')
        a('v_bfe_u32 v51, v0, 4, 1')
        a('v_add_u32 v50, v50, v51')
        a('s_lshl_b32 s4, s2, 3')
        a('v_add_u32 v50, s4, v50')
        a('v_lshlrev_b32 v50, 1, v50')
        a('buffer_load_ushort v50, v50, %s, 0 offen' % sr(SRD_B, 4))
        a('s_waitcnt vmcnt(0)')
        a('v_lshlrev_b32 v50, 16, v50')
        self.pair_inplace(WB, 8, 52)
        self.stamp(5)
        a('s_barrier')
        self.stamp(6)
        self.merge_publish()
        self.stamp(7)
        a('s_mul_i32 s4, s2, %d' % ASTR)
        a('s_lshl_b32 s5, s3, 11')
        a('s_add_u32 s4, s4, s5')
        a('s_add_u32 s4, s4, %d' % WS_A)
        a('v_lshlrev_b32 v24, 4, v0')
        a('v_add_u32 v25, s4, v24')
        a('s_lshr_b32 s4, s2, 2')
        a('s_lshl_b32 s4, s4, 10')
        a('s_add_u32 s4, s4, %d' % WS_ML)
        a('v_add_u32 v26, s4, v24')
        a('s_lshl_b32 s5, s3, 8')
        a('s_add_u32 s4, s4, s5')
        a('v_lshrrev_b32 v27, 3, v0')
        a('v_lshlrev_b32 v27, 4, v27')
        a('v_add_u32 v27, s4, v27')
        a('v_mov_b32 v28, s%d' % S_T12)
        a('s_mov_b32 s6, 0xfff')
        l = self.poll_begin()
        a('global_load_dwordx4 v[32:35], v26, %s sc1' % sr(P_WS, 2))
        a('global_load_dwordx4 v[36:39], v27, %s sc1' % sr(P_WS, 2))
        a('global_load_dwordx4 v[40:43], v27, %s offset:128 sc1' % sr(P_WS, 2))
        a('global_load_dwordx4 v[44:47], v25, %s sc1' % sr(P_WS, 2))
        a('global_load_dwordx4 v[52:55], v25, %s offset:1024 sc1' % sr(P_WS, 2))
        a('s_waitcnt vmcnt(0)')
        self.untag(list(range(32, 48)) + list(range(52, 56)), 28, 29)
        self.poll_end(l, 29, 6)
        self.stamp(8)
        a('v_mov_b32 v56, v32')
        self.wave_reduce([56], [57], 'v_max_f32')
        a('v_sub_f32 v32, v32, v56')
        a('v_sub_f32 v36, v36, v56')
        a('v_sub_f32 v40, v40, v56')
        for r in (32, 36, 40):
            a('v_mul_f32 v%d, s%d, v%d' % (r, S_LOG2E, r))
        for r in (32, 36, 40):
            a('v_exp_f32 v%d, v%d' % (r, r))
        a('v_mul_f32 v33, v32, v33')
        for i in range(4):
            a('v_mul_f32 v%d, v36, v%d' % (44 + i, 44 + i))
        for i in range(4):
            a('v_fmac_f32 v%d, v40, v%d' % (44 + i, 52 + i))
        self.wave_reduce([33], [57])
        self.halve([(44, 46), (45, 47)], 'v_permlane32_swap_b32')
        self.halve([(44, 45)], 'v_permlane16_swap_b32')
        a('v_add_f32_dpp v44, v44, v44 %s' % self.dpp('row_ror:8'))
        a('v_rcp_f32 v34, v33')
        a('v_lshrrev_b32 v57, 4, v0')
        a('v_and_b32 v58, 7, v0')
        a('v_lshl_add_u32 v57, v57, 3, v58')
        a('v_lshlrev_b32 v57, 4, v57')
        a('s_lshl_b32 s4, s3, 2')
        a('s_add_u32 s4, s4, %d' % L_RED)
        a('v_add_u32 v57, s4, v57')
        a('ds_write_b32 v57, v44')
        a('s_waitcnt lgkmcnt(0)')
        a('s_barrier')
        a('v_and_b32 v57, 31, v0')
        a('v_lshlrev_b32 v57, 4, v57')
        a('v_add_u32 v57, %d, v57' % L_RED)
        a('ds_read_b128 v[36:39], v57')
        a('s_waitcnt lgkmcnt(0)')
        a('v_add_f32 v36, v36, v37')
        a('v_add_f32 v38, v38, v39')
        a('v_add_f32 v36, v36, v38')
        a('v_mul_f32 v40, v36, v34')
        self.vec_from_red(40)
        self.matvec32_publish(WB, WS_B, BSTR, 2)
        self.stamp(9)
        done = self.lab('L_xdone')
        a('s_cmp_eq_u32 s3, 0')
        a('s_cbranch_scc0 %s' % done)
        self.reduce_inbox(WS_B, BSTR, 128)
        self.stamp(10)
        self.rnd_bf16(32, 32)
        a('v_add_f32 v32, v50, v32')
        self.rnd_bf16(51, 32)
        a('v_or_b32 v33, s%d, v51' % S_T16)
        self.unhalve4(33, 36)
        a('s_lshl_b32 s4, s2, 5')
        a('s_add_u32 s4, s4, %d' % WS_C)
        a('v_lshlrev_b32 v20, 4, v0')
        a('v_add_u32 v20, s4, v20')
        a('s_mov_b64 exec, 3')
        a('global_store_dwordx4 v20, v[36:39], %s sc1' % sr(P_WS, 2))
        a('s_mov_b64 exec, -1')
        self.stamp(11)
        self.reduce_inbox(WS_D, DSTR, 112)
        self.stamp(12)
        self.rnd_bf16(32, 32)
        a('v_add_f32 v32, v51, v32')
        self.unhalve4(32, 36)
        a('v_cvt_pk_bf16_f32 v36, v36, v37')
        a('v_cvt_pk_bf16_f32 v37, v38, v39')
        a('s_lshl_b32 s4, s2, 4')
        a('v_lshlrev_b32 v20, 3, v0')
        a('v_add_u32 v20, s4, v20')
        a('s_mov_b64 exec, 3')
        a('global_store_dwordx2 v20, v[36:37], %s' % sr(P_OUT, 2))
        noe = self.lab('L_noe')
        a('s_cmp_eq_u32 s2, 0')
        a('s_cbranch_scc0 %s' % noe)
        a('s_mov_b64 exec, 1')
        a('v_mov_b32 v20, %d' % WS_E)
        a('v_mov_b32 v21, s%d' % S_T)
        a('global_store_dword v20, v21, %s' % sr(P_WS, 2))
        a.label(noe)
        a('s_mov_b64 exec, -1')
        self.stamp(13)
        a.label(done)
        self.dump_stamps()
        a('s_endpgm')

    def hy(self):
        a = self.a
        a.label('L_hy')
        GB, UB, DB = 64, 128, 192
        a('s_and_b32 s4, s2, 7')
        a('s_mul_i32 s4, s4, 14')
        a('s_add_u32 s4, s4, s%d' % S_R)
        a('s_sub_u32 s%d, s4, 16' % S_IDX)
        a('v_lshrrev_b32 v10, 2, v0')
        a('v_lshlrev_b32 v10, 4, v10')
        a('s_lshl_b32 s4, s3, 8')
        a('v_add_u32 v10, s4, v10')
        a('s_movk_i32 s5, 7168')
        a('v_mul_lo_u32 v10, v10, s5')
        a('v_and_b32 v11, 3, v0')
        a('v_lshl_add_u32 v10, v11, 4, v10')
        a('s_lshl_b32 s4, s%d, 6' % S_IDX)
        a('v_add_u32 v10, s4, v10')
        self.load_gu(SRD_A, P_WG, GB)
        a('s_waitcnt vmcnt(0)')
        self.pair_inplace(GB, 8, 52)
        self.stamp(5)
        a('s_barrier')
        self.stamp(6)
        self.merge_publish()
        self.stamp(7)
        self.load_gu(SRD_B, P_WU, UB)
        self.load_w32x1024(SRD_C, P_WD, S_IDX, DB)
        a('s_waitcnt vmcnt(16)')
        self.pair_inplace(UB, 8, 52)
        a('s_waitcnt vmcnt(0)')
        self.pair_inplace(DB, 8, 52)
        self.stamp(8)
        a('v_lshlrev_b32 v2, 4, v0')
        a('v_add_u32 v2, %d, v2' % WS_C)
        a('v_lshrrev_b32 v3, 2, v0')
        a('v_lshlrev_b32 v3, 6, v3')
        a('s_lshl_b32 s4, s3, 10')
        a('s_add_u32 s4, s4, %d' % WS_C)
        a('v_add_u32 v3, s4, v3')
        a('v_mov_b32 v4, s%d' % S_T16)
        a('s_mov_b32 s6, 0xffff')
        l = self.poll_begin()
        for i in range(4):
            a('global_load_dwordx4 %s, v2, %s offset:%d sc1' % (vr(16 + 4 * i, 4), sr(P_WS, 2), i * 1024))
        for i in range(4):
            a('global_load_dwordx4 %s, v3, %s offset:%d sc1' % (vr(32 + 4 * i, 4), sr(P_WS, 2), i * 16))
        a('s_waitcnt vmcnt(0)')
        self.untag(list(range(16, 48)), 4, 5)
        self.poll_end(l, 5, 6)
        self.stamp(9)
        mb, sb, ri = self.layernorm_stats(list(range(16, 32)), 16, 48)
        XP = list(range(8, 16))
        self.normalize_pairs(list(range(32, 48)), mb, sb, ri, XP, 56)
        ag = list(range(16, 24)); au = list(range(24, 32))
        self.dot_paired(GB, 8, XP, ag)
        self.dot_paired(UB, 8, XP, au)
        self.halve([(ag[i], au[i]) for i in range(8)], 'v_permlane32_swap_b32')
        self.halve([(ag[i], ag[i + 4]) for i in range(4)], 'v_permlane16_swap_b32')
        for m in ('row_ror:8', 'row_ror:4'):
            for i in range(4):
                a('v_add_f32_dpp v%d, v%d, v%d %s' % (ag[i], ag[i], ag[i], self.dpp(m)))
        a('v_and_b32 v2, 3, v0')
        a('v_lshlrev_b32 v2, 5, v2')
        a('v_lshrrev_b32 v3, 5, v0')
        a('v_lshl_add_u32 v2, v3, 7, v2')
        a('v_bfe_u32 v3, v0, 4, 1')
        a('v_lshl_add_u32 v2, v3, 4, v2')
        a('s_lshl_b32 s4, s3, 8')
        a('s_add_u32 s4, s4, %d' % L_RED)
        a('v_add_u32 v2, s4, v2')
        a('s_mov_b32 s4, 0x000f000f')
        a('s_mov_b32 s5, 0x000f000f')
        a('s_mov_b64 exec, s[4:5]')
        a('ds_write_b128 v2, %s' % vr(ag[0], 4))
        a('s_mov_b64 exec, -1')
        a('s_waitcnt lgkmcnt(0)')
        a('s_barrier')
        a('v_and_b32 v2, 31, v0')
        a('v_lshlrev_b32 v2, 2, v2')
        a('v_add_u32 v2, %d, v2' % L_RED)
        a('ds_read2_b32 v[32:33], v2 offset0:0 offset1:64')
        a('ds_read2_b32 v[34:35], v2 offset0:128 offset1:192')
        a('ds_read2_b32 v[36:37], v2 offset0:32 offset1:96')
        a('ds_read2_b32 v[38:39], v2 offset0:160 offset1:224')
        a('s_waitcnt lgkmcnt(0)')
        a('v_add_f32 v32, v32, v33')
        a('v_add_f32 v34, v34, v35')
        a('v_add_f32 v36, v36, v37')
        a('v_add_f32 v38, v38, v39')
        a('v_add_f32 v32, v32, v34')
        a('v_add_f32 v36, v36, v38')
        self.rnd_bf16(32, 32)
        self.rnd_bf16(36, 36)
        a('v_mul_f32 v33, v32, v32')
        a('v_mov_b32 v34, 0x%08x' % f2u(0.044715))
        a('v_fma_f32 v33, v33, v34, 1.0')
        a('v_mul_f32 v33, v33, v32')
        a('v_mul_f32 v33, 0x%08x, v33' % f2u(-2.0 * 1.4426950408889634 * 0.7978845608028654))
        a('v_exp_f32 v33, v33')
        a('v_add_f32 v33, 1.0, v33')
        a('v_rcp_f32 v33, v33')
        a('v_mul_f32 v33, v32, v33')
        self.rnd_bf16(33, 33)
        a('v_mul_f32 v40, v33, v36')
        self.vec_from_red(40)
        self.matvec32_publish(DB, WS_D, DSTR, S_IDX)
        self.stamp(10)
        self.dump_stamps()
        a('s_endpgm')

import struct
def f2u(x):
    return struct.unpack('<I', struct.pack('<f', x))[0]

if __name__ == '__main__':
    ap = argparse.ArgumentParser()
    ap.add_argument('-o', default='k1.s')
    ap.add_argument('--diag', action='store_true')
    ap.add_argument('--dbgts', action='store_true')
    args = ap.parse_args()
    g = Gen(diag=args.diag or args.dbgts, dbgts=args.dbgts)
    txt = g.build()
    hdr = open('sequential_preLN__gqa_block_cached__geglu_ffn__decode.s.ref').read().split('; Override')[0]
    open(args.o, 'w').write(hdr + txt)
    print('wrote', args.o, 'lines', txt.count(chr(10)), 'nops', g.a.nnops)
```

```python
import sys, argparse, struct
sys.path.insert(0, 'gen')
from asmlib import Asm

KNAME = 'sequential_preLN__gqa_block_cached__geglu_ffn__decode_kernel'
def f2u(x): return struct.unpack('<I', struct.pack('<f', x))[0]

WS_E = 0
WS_Q = 0x1000
WS_ML = 0x20000
WS_A = 0x40000;  ASTR = 4096 + 128
WS_B = 0x150000; BSTR = 2048 + 128
WS_C = 0x260000
WS_EE = 0x262000
WS_D = 0x280000; DSTR = 1024 + 128
WS_END = 0x380000
WS_TS = 0x8000000
L_KR = 0
L_QF = 98304
L_QRED = L_QF + 2048
L_CNT = L_QRED + 1024
L_OP = L_CNT + 64
HSTR = 528
WSTR = 8 * HSTR + 64
L_RED = L_OP + 4 * WSTR
L_VEC = L_RED + 1024
L_GU = L_VEC + 256
GUSTR = 544
L_SVEC = L_GU + 4 * GUSTR
L_END = L_SVEC + 512
SPIN_LIMIT = 400000

def vr(a, n=1):
    return 'v%d' % a if n == 1 else 'v[%d:%d]' % (a, a + n - 1)
def sr(a, n=1):
    return 's%d' % a if n == 1 else 's[%d:%d]' % (a, a + n - 1)

P_X, P_K, P_V, P_WQ, P_WO, P_BX, P_WG, P_WU = 16, 18, 20, 22, 24, 26, 28, 30
P_WD, P_OUT, P_DBG, P_WS = 32, 34, 36, 38
S_T, S_G, S_C, S_R, S_IDX, S_T8, S_T12, S_T16 = 40, 41, 42, 43, 44, 45, 46, 47
SRD_A, SRD_B, SRD_C = 48, 52, 56
S_SELLO, S_SELHI, S_SCALE, S_LOG2E = 60, 61, 62, 63
S_TS = 64
S_SPIN, S_HI16, S_M8, S_M12, S_KQ, S_RING = 96, 97, 98, 99, 100, 101

class Gen:
    def __init__(self, diag=False, ngroups=8, dbgts=False, opt=None):
        self.a = Asm()
        self.diag = diag
        self.dbgts = dbgts
        self.ng = ngroups
        self.uid = 0
        self.opt = opt or {}
    def lab(self, p='L'):
        self.uid += 1
        return '%s_%d' % (p, self.uid)
    def stamp(self, k):
        if self.diag:
            self.a('s_memrealtime %s' % sr(S_TS + 2 * k, 2))
    def dump_stamps(self, wave_expr_add=0):
        if not self.diag: return
        a = self.a
        a('s_waitcnt vmcnt(0) lgkmcnt(0)')
        a('s_mov_b64 exec, -1')
        if self.dbgts:
            sk = self.lab('L_nodbg')
            a('s_cmp_eq_u32 s2, %d' % self.dbgts_wg)
            a('s_cbranch_scc0 %s' % sk)
            a('s_cmp_eq_u32 s3, 0')
            a('s_cbranch_scc0 %s' % sk)
            if wave_expr_add == 0:
                a('s_mov_b64 exec, 1')
                a('v_mov_b32 v1, 0')
                for i in range(4):
                    for k in range(4):
                        a('s_sub_u32 s4, s%d, s%d' % (S_TS + 2 * (4 * i + k), S_TS))
                        a('v_mov_b32 v%d, s4' % (4 + k))
                    a('global_store_dwordx4 v1, v[4:7], %s offset:%d' % (sr(P_DBG, 2), 16 * i))
                    a('s_nop 1')
                a('s_waitcnt vmcnt(0)')
            a.label(sk)
        a('s_lshl_b32 s4, s2, 3')
        a('s_add_u32 s4, s4, s3')
        if wave_expr_add: a('s_add_u32 s4, s4, %d' % wave_expr_add)
        a('s_lshl_b32 s4, s4, 7')
        a('s_add_u32 s4, s4, 0x%x' % WS_TS)
        a('v_mov_b32 v1, s4')
        a('s_mov_b64 exec, 1')
        for i in range(8):
            for k in range(4):
                a('v_mov_b32 v%d, s%d' % (4 + k, S_TS + 4 * i + k))
            a('global_store_dwordx4 v1, v[4:7], %s offset:%d' % (sr(P_WS, 2), 16 * i))
            a('s_nop 1')
        a('s_waitcnt vmcnt(0)')
    dbgts_wg = 255

    def srd(self, s, ptr, size, off_sregs=None):
        a = self.a
        if off_sregs is None:
            a('s_mov_b32 s%d, s%d' % (s, ptr))
            a('s_and_b32 s%d, s%d, 0xffff' % (s + 1, ptr + 1))
        else:
            a('s_add_u32 s%d, s%d, %s' % (s, ptr, off_sregs))
            a('s_addc_u32 s%d, s%d, 0' % (s + 1, ptr + 1))
            a('s_and_b32 s%d, s%d, 0xffff' % (s + 1, s + 1))
        a('s_mov_b32 s%d, 0x%x' % (s + 2, size))
        a('s_mov_b32 s%d, 0x20000' % (s + 3))
    def dpp(self, mod):
        return '%s row_mask:0xf bank_mask:0xf' % mod
    def wave_reduce(self, regs, tmp, op='v_add_f32'):
        a = self.a
        ops = op if isinstance(op, list) else [op] * len(regs)
        for mod in ('quad_perm:[1,0,3,2]', 'quad_perm:[2,3,0,1]', 'row_half_mirror', 'row_mirror'):
            for r, o in zip(regs, ops):
                a('%s_dpp v%d, v%d, v%d %s' % (o, r, r, r, self.dpp(mod)))
        for sw in ('v_permlane16_swap_b32', 'v_permlane32_swap_b32'):
            for r, t in zip(regs, tmp):
                a('v_mov_b32 v%d, v%d' % (t, r))
            for r, t in zip(regs, tmp):
                a('%s v%d, v%d' % (sw, t, r))
            for r, t, o in zip(regs, tmp, ops):
                a('%s v%d, v%d, v%d' % (o, r, r, t))
    def halve(self, pairs, sw):
        a = self.a
        for x, y in pairs:
            a('%s v%d, v%d' % (sw, x, y))
        for x, y in pairs:
            a('v_add_f32 v%d, v%d, v%d' % (x, x, y))
    def rnd_bf16(self, dst, src):
        a = self.a
        a('v_cvt_pk_bf16_f32 v%d, v%d, v%d' % (dst, src, src))
        a('v_and_b32 v%d, s%d, v%d' % (dst, S_HI16, dst))
    def unpack(self, lo, hi, src):
        a = self.a
        a('v_lshlrev_b32 v%d, 16, v%d' % (lo, src))
        a('v_and_b32 v%d, s%d, v%d' % (hi, S_HI16, src))
    def poll_begin(self):
        l = self.lab('L_poll')
        self.a('s_mov_b32 s%d, 0' % S_SPIN)
        self.a.label(l)
        return l
    def poll_end(self, l, vbad, smask, sleep=0):
        a = self.a
        ok = self.lab('L_ok')
        a('v_and_b32 v%d, s%d, v%d' % (vbad, smask, vbad))
        a('v_cmp_ne_u32 vcc, 0, v%d' % vbad)
        a('s_cbranch_vccz %s' % ok)
        if sleep: a('s_sleep %d' % sleep)
        a('s_add_u32 s%d, s%d, 1' % (S_SPIN, S_SPIN))
        a('s_cmp_lt_u32 s%d, %d' % (S_SPIN, SPIN_LIMIT))
        a('s_cbranch_scc1 %s' % l)
        a('s_branch L_abort')
        a.label(ok)
    def mpoll_begin(self):
        l = self.lab('L_mp')
        self.a('s_mov_b32 s%d, 0' % S_SPIN)
        self.a.label(l)
        return l
    def mpoll_end(self, l, vbad, smask, sleep=0, restore='-1'):
        a = self.a
        ok = self.lab('L_mok')
        a('v_and_b32 v%d, s%d, v%d' % (vbad, smask, vbad))
        a('v_cmp_ne_u32 vcc, 0, v%d' % vbad)
        a('s_and_b64 exec, exec, vcc')
        a('s_cbranch_execz %s' % ok)
        if sleep: a('s_sleep %d' % sleep)
        a('s_add_u32 s%d, s%d, 1' % (S_SPIN, S_SPIN))
        a('s_cmp_lt_u32 s%d, %d' % (S_SPIN, SPIN_LIMIT))
        a('s_cbranch_scc1 %s' % l)
        a('s_branch L_abort')
        a.label(ok)
        a('s_mov_b64 exec, %s' % restore)
    def untag(self, regs, vT, vbad):
        a = self.a
        for r in regs:
            a('v_xor_b32 v%d, v%d, v%d' % (r, vT, r))
        first = True; i = 0
        while i < len(regs):
            if first:
                if len(regs) - i >= 2:
                    a('v_or_b32 v%d, v%d, v%d' % (vbad, regs[i], regs[i + 1])); i += 2
                else:
                    a('v_mov_b32 v%d, v%d' % (vbad, regs[i])); i += 1
                first = False
            elif len(regs) - i >= 2:
                a('v_or3_b32 v%d, v%d, v%d, v%d' % (vbad, vbad, regs[i], regs[i + 1])); i += 2
            else:
                a('v_or_b32 v%d, v%d, v%d' % (vbad, vbad, regs[i])); i += 1
    def ln_finish_stats(self, mean, var, mb, sb, ri):
        a = self.a
        self.rnd_bf16(mb, mean)
        self.rnd_bf16(var, var)
        a('v_add_f32 v%d, 0x3727c5ac, v%d' % (var, var))
        self.rnd_bf16(var, var)
        a('v_sqrt_f32 v%d, v%d' % (var, var))
        self.rnd_bf16(sb, var)
        a('v_rcp_f32 v%d, v%d' % (ri, sb))
    def layernorm_stats(self, f, n, t0):
        a = self.a
        s, tt, q = t0, t0 + 1, t0 + 2
        mb, sb, ri = t0 + 4, t0 + 5, t0 + 6
        a('v_add_f32 v%d, v%d, v%d' % (s, f[0], f[1]))
        a('v_add_f32 v%d, v%d, v%d' % (q, f[2], f[3]))
        for i in range(4, n, 2):
            a('v_add_f32 v%d, v%d, v%d' % (s, s, f[i]))
            a('v_add_f32 v%d, v%d, v%d' % (q, q, f[i + 1]))
        a('v_add_f32 v%d, v%d, v%d' % (s, s, q))
        self.wave_reduce([s], [tt])
        a('v_mul_f32 v%d, 0x3a800000, v%d' % (s, s))
        a('v_sub_f32 v%d, v%d, v%d' % (tt, f[0], s))
        a('v_mul_f32 v%d, v%d, v%d' % (q, tt, tt))
        for i in range(1, n):
            a('v_sub_f32 v%d, v%d, v%d' % (tt, f[i], s))
            a('v_fmac_f32 v%d, v%d, v%d' % (q, tt, tt))
        self.wave_reduce([q], [tt])
        a('v_mul_f32 v%d, 0x3a800000, v%d' % (q, q))
        self.ln_finish_stats(s, q, mb, sb, ri)
        return mb, sb, ri
    def normalize_pairs(self, f, mb, sb, ri, out, t0):
        a = self.a
        d0, d1, q0, q1 = t0, t0 + 1, t0 + 2, t0 + 3
        for k in range(len(f) // 2):
            a('v_sub_f32 v%d, v%d, v%d' % (d0, f[2 * k], mb))
            a('v_sub_f32 v%d, v%d, v%d' % (d1, f[2 * k + 1], mb))
            a('v_cvt_pk_bf16_f32 v%d, v%d, v%d' % (d1, d0, d1))
            a('v_lshlrev_b32 v%d, 16, v%d' % (d0, d1))
            a('v_and_b32 v%d, s%d, v%d' % (d1, S_HI16, d1))
            a('v_mul_f32 v%d, v%d, v%d' % (q0, d0, ri))
            a('v_mul_f32 v%d, v%d, v%d' % (q1, d1, ri))
            a('v_fma_f32 v%d, -v%d, v%d, v%d' % (d0, q0, sb, d0))
            a('v_fma_f32 v%d, -v%d, v%d, v%d' % (d1, q1, sb, d1))
            a('v_fmac_f32 v%d, v%d, v%d' % (q0, d0, ri))
            a('v_fmac_f32 v%d, v%d, v%d' % (q1, d1, ri))
            a('v_cvt_pk_bf16_f32 v%d, v%d, v%d' % (out[k], q0, q1))
    def pair_inplace(self, base, npairs, tmp):
        a = self.a
        for tp in range(npairs):
            A = base + 8 * tp; B = A + 4
            for i in range(4):
                a('v_perm_b32 v%d, v%d, v%d, s%d' % (tmp + (i & 1), B + i, A + i, S_SELLO))
                a('v_perm_b32 v%d, v%d, v%d, s%d' % (B + i, B + i, A + i, S_SELHI))
                a('v_mov_b32 v%d, v%d' % (A + i, tmp + (i & 1)))
    def dot_paired(self, base, npairs, xp, acc, xconst=None):
        a = self.a
        for tp in range(npairs):
            A = base + 8 * tp; B = A + 4
            x = xconst if xconst else 'v%d' % xp[tp]
            for i in range(4):
                c0 = '0' if tp == 0 else 'v%d' % acc[2 * i]
                c1 = '0' if tp == 0 else 'v%d' % acc[2 * i + 1]
                if tp == 0 or xconst:
                    a('v_dot2_f32_bf16 v%d, v%d, %s, %s' % (acc[2 * i], A + i, x, c0))
                    a('v_dot2_f32_bf16 v%d, v%d, %s, %s' % (acc[2 * i + 1], B + i, x, c1))
                else:
                    a('v_dot2c_f32_bf16 v%d, v%d, %s' % (acc[2 * i], A + i, x))
                    a('v_dot2c_f32_bf16 v%d, v%d, %s' % (acc[2 * i + 1], B + i, x))
    def sync4(self, cnt_off, target=4):
        a = self.a
        a('s_waitcnt lgkmcnt(0)')
        a('v_mov_b32 v62, %d' % (L_CNT + cnt_off))
        a('v_mov_b32 v63, 1')
        a('s_mov_b64 exec, 1')
        a('ds_add_u32 v62, v63')
        a('s_mov_b64 exec, -1')
        l = self.poll_begin()
        a('ds_read_b32 v63, v62')
        a('s_waitcnt lgkmcnt(0)')
        a('v_readfirstlane_b32 s4, v63')
        ok = self.lab('L_sy')
        a('s_cmp_ge_u32 s4, %d' % target)
        a('s_cbranch_scc1 %s' % ok)
        a('s_add_u32 s%d, s%d, 1' % (S_SPIN, S_SPIN))
        a('s_cmp_lt_u32 s%d, %d' % (S_SPIN, SPIN_LIMIT * 4))
        a('s_cbranch_scc1 %s' % l)
        a('s_branch L_abort')
        a.label(ok)

    def collect(self, fn):
        class C:
            def __init__(s2): s2.l = []
            def __call__(s2, t):
                for x in t.split('\n'):
                    x = x.strip()
                    if x: s2.l.append(x)
        old = self.a; c = C(); self.a = c
        fn(c)
        self.a = old
        return c.l
    def interleave(self, la, lb, ra=1, rb=1):
        a = self.a
        i = j = 0
        while i < len(la) or j < len(lb):
            for _ in range(ra):
                if i < len(la): a(la[i]); i += 1
            for _ in range(rb):
                if j < len(lb): a(lb[j]); j += 1

    def build(self):
        a = self.a
        a.raw('; @launch grid=(256,1,1) block=(512,1,1) lds=%d' % L_END)
        a.raw('.amdgcn_target "amdgcn-amd-amdhsa--gfx950"')
        a.raw('.text')
        a.raw('.globl %s\n.p2align 8\n.type %s,@function\n%s:' % (KNAME, KNAME, KNAME))
        a('s_cmp_ge_u32 s2, 256')
        a('s_cbranch_scc1 L_exit')
        if self.diag:
            for k in range(16): a('s_mov_b64 %s, 0' % sr(S_TS + 2 * k, 2))
        self.stamp(0)
        a('s_load_dwordx16 s[16:31], s[0:1], 0')
        a('s_load_dwordx8 s[32:39], s[0:1], 64')
        a('v_lshrrev_b32 v1, 6, v0')
        a('v_and_b32 v0, 63, v0')
        a('v_readfirstlane_b32 s3, v1')
        a('s_lshr_b32 s%d, s2, 3' % S_R)
        a('s_and_b32 s%d, s%d, 3' % (S_G, S_R))
        a('s_lshr_b32 s4, s%d, 2' % S_R)
        a('s_lshl_b32 s4, s4, 3')
        a('s_and_b32 s5, s2, 7')
        a('s_add_u32 s%d, s4, s5' % S_C)
        a('s_mov_b32 s%d, 0x05040100' % S_SELLO)
        a('s_mov_b32 s%d, 0x07060302' % S_SELHI)
        a('s_mov_b32 s%d, 0x3db504f3' % S_SCALE)
        a('s_mov_b32 s%d, 0x3fb8aa3b' % S_LOG2E)
        a('s_mov_b32 s%d, 0xffff0000' % S_HI16)
        a('s_mov_b32 s%d, 0xffffff00' % S_M8)
        a('s_mov_b32 s%d, 0xfffff000' % S_M12)
        a('s_waitcnt lgkmcnt(0)')
        a('s_cmp_ge_u32 s3, 4')
        a('s_cbranch_scc1 L_swave')
        self.hwave()
        self.swave()
        a.label('L_abort')
        a('s_endpgm')
        a.label('L_exit')
        a('s_endpgm')
        a.raw('.section .rodata,"a"\n.p2align 6\n.amdhsa_kernel %s' % KNAME)
        a.raw('  .amdhsa_next_free_vgpr 256\n  .amdhsa_next_free_sgpr 102\n  .amdhsa_accum_offset 256')
        a.raw('  .amdhsa_group_segment_fixed_size 0\n  .amdhsa_kernarg_size 96\n  .amdhsa_user_sgpr_count 2')
        a.raw('  .amdhsa_user_sgpr_kernarg_segment_ptr 1\n  .amdhsa_system_sgpr_workgroup_id_x 1\n.end_amdhsa_kernel')
        return a.text()

    def load_tags(self):
        a = self.a
        a('s_add_u32 s%d, s%d, 1' % (S_T, S_T))
        a('s_and_b32 s%d, s%d, 0xff' % (S_T8, S_T))
        a('s_and_b32 s%d, s%d, 0xfff' % (S_T12, S_T))
        a('s_and_b32 s%d, s%d, 0xffff' % (S_T16, S_T))

    def swave(self):
        a = self.a
        ng = self.ng
        a.label('L_swave')
        vKsrc = [2, 3, 4, 5]; vVsrc = 6; vKrd = [7, 8, 9, 10]
        vM, vL, vAl, vNM = 12, 13, 14, 11
        Q = 16; D = 32; S = 40; P = 48; T = 52
        ACC = 64; KT = 96; VT = 128; VR = 160
        a('s_load_dword s%d, %s, %d' % (S_T, sr(P_WS, 2), WS_E))
        a('s_sub_u32 s3, s3, 4')
        a('s_lshl_b32 s4, s%d, 24' % S_G)
        a('s_mul_i32 s5, s%d, %d' % (S_C, 4 * ng * 32 * 256))
        a('s_add_u32 s4, s4, s5')
        a('s_mul_i32 s5, s3, %d' % (ng * 32 * 256))
        a('s_add_u32 s4, s4, s5')
        self.srd(SRD_A, P_K, ng * 8192, 's4')
        self.srd(SRD_B, P_V, ng * 8192, 's4')
        a('s_mul_i32 s%d, s3, 24576' % S_RING)
        a('v_lshrrev_b32 v14, 4, v0')
        a('v_and_b32 v15, 15, v0')
        for i in range(4):
            a('v_lshlrev_b32 v11, 2, v14')
            a('v_add_u32 v11, %d, v11' % i)
            a('v_xor_b32 v11, v11, v15')
            a('v_lshlrev_b32 v11, 4, v11')
            a('v_lshl_add_u32 v%d, v14, 8, v11' % vKsrc[i])
        a('v_lshlrev_b32 v%d, 4, v0' % vVsrc)
        a('v_and_b32 v16, 3, v15')
        a('v_lshrrev_b32 v17, 2, v15')
        a('v_lshl_add_u32 v18, v16, 2, v17')
        a('v_lshlrev_b32 v18, 8, v18')
        a('v_add_u32 v18, s%d, v18' % S_RING)
        a('v_xor_b32 v19, v14, v16')
        for s in range(4):
            a('v_xor_b32 v20, %d, v17' % s)
            a('v_lshl_add_u32 v20, v20, 2, v19')
            a('v_lshl_add_u32 v%d, v20, 4, v18' % vKrd[s])
        a('v_and_b32 v21, 7, v15')
        a('v_lshlrev_b32 v21, 8, v21')
        a('v_lshl_add_u32 v21, v14, 4, v21')
        a('v_add_u32 v21, %d, v21' % L_QF)
        a('s_mul_i32 s6, s3, %d' % WSTR)
        a('s_add_u32 s6, s6, %d' % L_OP)
        a('v_mul_u32_u24 v22, %d, v15' % HSTR)
        a('v_lshl_add_u32 v22, v14, 7, v22')
        a('v_add_u32 v1, s6, v22')
        a('v_mov_b32 v15, v21')
        a('s_barrier')
        vm = []
        def issueK(i):
            slot = i % 3
            a('s_mov_b32 s4, %d' % (i * 8192))
            a('s_mov_b32 s5, %d' % (i * 8192 + 4096))
            a('s_add_u32 m0, s%d, %d' % (S_RING, slot * 8192))
            for ii in range(4):
                a('buffer_load_dwordx4 v%d, %s, s4 offen offset:%d nt lds' % (vKsrc[ii], sr(SRD_A, 4), ii * 1024))
                vm.append(('K', i))
            a('s_add_u32 m0, s%d, %d' % (S_RING, slot * 8192 + 4096))
            for ii in range(4):
                a('buffer_load_dwordx4 v%d, %s, s5 offen offset:%d nt lds' % (vKsrc[ii], sr(SRD_A, 4), ii * 1024))
                vm.append(('K', i))
        def issueV(i):
            slot = i % 3
            a('s_mov_b32 s6, %d' % (i * 8192))
            a('s_mov_b32 s7, %d' % (i * 8192 + 4096))
            for t in range(8):
                a('buffer_load_dwordx4 %s, v%d, %s, s%d offen offset:%d nt' % (
                    vr(VR + slot * 32 + 4 * t, 4), vVsrc, sr(SRD_B, 4), 6 if t < 4 else 7, (t & 3) * 1024))
                vm.append(('V', i))
        def waitvm(tag):
            idx = max(k for k, x in enumerate(vm) if x == tag)
            n = len(vm) - 1 - idx
            a('s_waitcnt vmcnt(%d)' % n)
            del vm[:idx + 1]
        for i in range(min(3, ng)):
            issueK(i); issueV(i)
        self.stamp(1)
        a('s_barrier')
        self.stamp(2)
        for s in range(4):
            a('ds_read_b128 %s, v15 offset:%d' % (vr(Q + 4 * s, 4), s * 64))
        a('v_mov_b32 v%d, 0xff800000' % vM)
        a('v_mov_b32 v%d, 0' % vL)
        for i in range(32):
            a('v_mov_b32 v%d, 0' % (ACC + i))
        a('s_waitcnt lgkmcnt(0)')
        self.load_tags()
        for i in range(ng):
            slot = i % 3
            waitvm(('K', i))
            for u in range(2):
                for s in range(4):
                    a('ds_read_b128 %s, v%d offset:%d' % (vr(KT + 16 * u + 4 * s, 4), vKrd[s], slot * 8192 + u * 4096))
            a('s_waitcnt lgkmcnt(4)')
            for s in range(4):
                a('v_mfma_f32_16x16x32_bf16 %s, %s, %s, %s' % (vr(D, 4), vr(KT + 4 * s, 4), vr(Q + 4 * s, 4), '0' if s == 0 else vr(D, 4)))
            a('s_waitcnt lgkmcnt(0)')
            for s in range(4):
                a('v_mfma_f32_16x16x32_bf16 %s, %s, %s, %s' % (vr(D + 4, 4), vr(KT + 16 + 4 * s, 4), vr(Q + 4 * s, 4), '0' if s == 0 else vr(D + 4, 4)))
            if i + 3 < ng: issueK(i + 3)
            for k in range(4):
                a('v_cvt_pk_bf16_f32 v%d, v%d, v%d' % (T + k, D + 2 * k, D + 2 * k + 1))
            for k in range(4):
                self.unpack(S + 2 * k, S + 2 * k + 1, T + k)
            for k in range(8):
                a('v_mul_f32 v%d, s%d, v%d' % (S + k, S_SCALE, S + k))
            for k in range(4):
                a('v_cvt_pk_bf16_f32 v%d, v%d, v%d' % (T + k, S + 2 * k, S + 2 * k + 1))
            for k in range(4):
                self.unpack(S + 2 * k, S + 2 * k + 1, T + k)
            a('v_max3_f32 v%d, v%d, v%d, v%d' % (T, S, S + 1, S + 2))
            a('v_max3_f32 v%d, v%d, v%d, v%d' % (T + 1, S + 3, S + 4, S + 5))
            a('v_max3_f32 v%d, v%d, v%d, v%d' % (T, T, S + 6, S + 7))
            a('v_max3_f32 v%d, v%d, v%d, v%d' % (T, T, T + 1, vM))
            for sw in ('v_permlane16_swap_b32', 'v_permlane32_swap_b32'):
                a('v_mov_b32 v%d, v%d' % (T + 1, T))
                a('%s v%d, v%d' % (sw, T + 1, T))
                a('v_max_f32 v%d, v%d, v%d' % (T, T, T + 1))
            a('v_sub_f32 v%d, v%d, v%d' % (T + 1, vM, T))
            a('v_mul_f32 v%d, s%d, v%d' % (T + 1, S_LOG2E, T + 1))
            a('v_mul_f32 v%d, s%d, v%d' % (vNM, S_LOG2E, T))
            a('v_exp_f32 v%d, v%d' % (vAl, T + 1))
            a('v_mov_b32 v%d, v%d' % (vM, T))
            for k in range(8):
                a('v_fma_f32 v%d, v%d, s%d, -v%d' % (S + k, S + k, S_LOG2E, vNM))
            for k in range(8):
                a('v_exp_f32 v%d, v%d' % (S + k, S + k))
            a('v_add_f32 v%d, v%d, v%d' % (T, S, S + 1))
            a('v_add_f32 v%d, v%d, v%d' % (T + 1, S + 2, S + 3))
            a('v_add_f32 v%d, v%d, v%d' % (T + 2, S + 4, S + 5))
            a('v_add_f32 v%d, v%d, v%d' % (T + 3, S + 6, S + 7))
            a('v_add_f32 v%d, v%d, v%d' % (T, T, T + 1))
            a('v_add_f32 v%d, v%d, v%d' % (T + 2, T + 2, T + 3))
            a('v_add_f32 v%d, v%d, v%d' % (T, T, T + 2))
            a('v_fma_f32 v%d, v%d, v%d, v%d' % (vL, vL, vAl, T))
            for k in range(4):
                a('v_cvt_pk_bf16_f32 v%d, v%d, v%d' % (P + k, S + 2 * k, S + 2 * k + 1))
            if i > 0:
                for k in range(16):
                    a('v_pk_mul_f32 %s, %s, %s op_sel_hi:[1,0]' % (vr(ACC + 2 * k, 2), vr(ACC + 2 * k, 2), vr(vAl, 2)))
            waitvm(('V', i))
            R = VR + slot * 32
            for j in range(8):
                for rho in range(4):
                    a('v_perm_b32 v%d, v%d, v%d, s%d' % (VT + 4 * j + rho, R + 4 * (2 * rho + 1) + (j >> 1), R + 4 * (2 * rho) + (j >> 1), S_SELHI if (j & 1) else S_SELLO))
            if i + 3 < ng: issueV(i + 3)
            for j in range(8):
                a('v_mfma_f32_16x16x32_bf16 %s, %s, %s, %s' % (vr(ACC + 4 * j, 4), vr(VT + 4 * j, 4), vr(P, 4), vr(ACC + 4 * j, 4)))
            if i in (0, 3, 7): self.stamp({0: 3, 3: 4, 7: 5}[i])
        for sw in ('v_permlane16_swap_b32', 'v_permlane32_swap_b32'):
            a('v_mov_b32 v%d, v%d' % (T + 1, vL))
            a('%s v%d, v%d' % (sw, T + 1, vL))
            a('v_add_f32 v%d, v%d, v%d' % (vL, vL, T + 1))
        a('v_and_b32 v%d, 8, v0' % T)
        a('v_cmp_eq_u32 vcc, 0, v%d' % T)
        a('s_and_saveexec_b64 s[4:5], vcc')
        for j in range(8):
            a('ds_write_b128 v1, %s offset:%d' % (vr(ACC + 4 * j, 4), j * 16))
        a('s_mov_b64 exec, 0xff')
        a('s_mul_i32 s6, s3, %d' % WSTR)
        a('s_add_u32 s6, s6, %d' % (L_OP + 8 * HSTR))
        a('v_lshlrev_b32 v%d, 3, v0' % T)
        a('v_add_u32 v%d, s6, v%d' % (T, T))
        a('ds_write_b64 v%d, %s' % (T, vr(vM, 2)))
        a('s_mov_b64 exec, -1')
        a('s_waitcnt lgkmcnt(0)')
        self.stamp(6)
        a('s_barrier')
        if self.opt.get('b6'): a('s_barrier')
        sdone = self.lab('L_sdone')
        a('s_cmp_ge_u32 s%d, 28' % S_R)
        a('s_cbranch_scc1 %s' % sdone)
        self.ffn()
        a.label(sdone)
        self.dump_stamps(4)
        a('s_endpgm')

    def lds_wait(self, off, target):
        a = self.a
        a('v_mov_b32 v62, %d' % (L_CNT + off))
        l = self.poll_begin()
        a('ds_read_b32 v63, v62')
        a('s_waitcnt lgkmcnt(0)')
        a('v_readfirstlane_b32 s4, v63')
        ok = self.lab('L_lw')
        a('s_cmp_ge_u32 s4, %d' % target)
        a('s_cbranch_scc1 %s' % ok)
        a('s_sleep 1')
        a('s_add_u32 s%d, s%d, 1' % (S_SPIN, S_SPIN))
        a('s_cmp_lt_u32 s%d, %d' % (S_SPIN, SPIN_LIMIT * 4))
        a('s_cbranch_scc1 %s' % l)
        a('s_branch L_abort')
        a.label(ok)

    def ffn(self):
        a = self.a
        GB, UB, DB = 64, 96, 128
        HF = 160
        a('s_and_b32 s4, s2, 7')
        a('s_mul_i32 s4, s4, 7')
        a('s_lshr_b32 s5, s%d, 2' % S_R)
        a('s_add_u32 s%d, s4, s5' % S_IDX)
        a('s_and_b32 s%d, s%d, 3' % (S_KQ, S_R))
        a('v_lshrrev_b32 v2, 3, v0')
        a('s_mov_b32 s5, %d' % (8 * 7168))
        a('v_mul_lo_u32 v2, v2, s5')
        a('v_and_b32 v3, 7, v0')
        a('v_lshl_add_u32 v2, v3, 4, v2')
        a('s_lshl_b32 s6, s%d, 8' % S_KQ)
        a('s_lshl_b32 s7, s3, 6')
        a('s_add_u32 s6, s6, s7')
        a('s_mul_i32 s7, s6, 7168')
        a('s_lshl_b32 s8, s%d, 7' % S_IDX)
        a('s_add_u32 s7, s7, s8')
        self.srd(SRD_A, P_WG, 1024 * 7168)
        self.srd(SRD_B, P_WU, 1024 * 7168)
        a('s_lshl_b32 s8, s%d, 17' % S_IDX)
        self.srd(SRD_C, P_WD, 64 * 2048, 's8')
        a('v_lshrrev_b32 v3, 3, v0')
        a('v_lshlrev_b32 v3, 14, v3')
        a('v_and_b32 v4, 7, v0')
        a('v_lshl_add_u32 v3, v4, 4, v3')
        a('s_lshl_b32 s8, s%d, 9' % S_KQ)
        a('s_lshl_b32 s9, s3, 7')
        a('s_add_u32 s8, s8, s9')
        a('v_add_u32 v3, s8, v3')
        if self.opt.get('late'):
            go = self.lab('L_go')
            self.lds_wait(8, 1)
            a('s_cmp_eq_u32 s4, 1')
            a('s_cbranch_scc1 %s' % go)
            self.lds_wait(12, 4)
            a.label(go)
        W = self.opt.get('win', 64)
        nis = [0]
        def thr():
            if nis[0] >= W: a('s_waitcnt vmcnt(%d)' % (W - 1))
            nis[0] += 1
        for (srd, base) in ((SRD_A, GB), (SRD_B, UB)):
            a('s_mov_b32 s8, s7')
            for t in range(8):
                thr()
                a('buffer_load_dwordx4 %s, v2, %s, s8 offen nt' % (vr(base + 4 * t, 4), sr(srd, 4)))
                if t < 7: a('s_add_u32 s8, s8, 7168')
        for t in range(8):
            if t % 2 == 0: a('s_mov_b32 s8, %d' % ((t >> 1) * 4096))
            thr()
            a('buffer_load_dwordx4 %s, v3, %s, s8 offen offset:%d nt' % (vr(DB + 4 * t, 4), sr(SRD_C, 4), (t & 1) * 2048))
        self.stamp(7)
        a('v_and_b32 v5, 7, v0')
        a('v_lshlrev_b32 v5, 5, v5')
        a('v_lshrrev_b32 v6, 5, v0')
        a('v_lshl_add_u32 v5, v6, 8, v5')
        a('v_bfe_u32 v6, v0, 4, 1')
        a('v_lshl_add_u32 v5, v6, 4, v5')
        a('s_mul_i32 s8, s3, 1088')
        a('v_add_u32 v5, s8, v5')
        a('s_waitcnt vmcnt(16)')
        self.pair_inplace(GB, 4, 8)
        a('s_mov_b32 s8, 0x3f803f80')
        csg = list(range(16, 24)); csu = list(range(24, 32))
        self.dot_paired(GB, 4, None, csg, xconst='s8')
        a('s_waitcnt vmcnt(8)')
        self.pair_inplace(UB, 4, 8)
        self.dot_paired(UB, 4, None, csu, xconst='s8')
        self.halve([(csg[i], csu[i]) for i in range(8)], 'v_permlane32_swap_b32')
        self.halve([(csg[i], csg[i + 4]) for i in range(4)], 'v_permlane16_swap_b32')
        for i in range(4):
            a('v_add_f32_dpp v%d, v%d, v%d %s' % (csg[i], csg[i], csg[i], self.dpp('row_ror:8')))
        a('s_mov_b32 s10, 0x00ff00ff')
        a('s_mov_b32 s11, 0x00ff00ff')
        a('s_mov_b64 exec, s[10:11]')
        a('ds_write_b128 v5, %s offset:512' % vr(csg[0], 4))
        a('s_mov_b64 exec, -1')
        a('s_waitcnt vmcnt(0)')
        self.pair_inplace(DB, 4, 8)
        self.stamp(8)
        a('v_lshlrev_b32 v2, 4, v0')
        a('v_add_u32 v4, %d, v2' % WS_C)
        a('v_lshrrev_b32 v6, 3, v0')
        a('v_lshlrev_b32 v6, 5, v6')
        a('s_lshl_b32 s8, s6, 2')
        a('s_add_u32 s8, s8, %d' % WS_C)
        a('v_add_u32 v6, s8, v6')
        a('v_mov_b32 v7, s%d' % S_T16)
        a('s_mov_b32 s9, 0xffff')
        a('s_lshl_b32 s8, s%d, 11' % S_IDX)
        a('s_add_u32 s8, s8, %d' % WS_EE)
        a('v_add_u32 v17, s8, v2')
        a('s_lshl_b32 s7, s%d, 9' % S_KQ)
        a('v_add_u32 v16, s7, v17')
        a('s_lshl_b32 s8, s%d, 2' % S_IDX)
        a('s_add_u32 s8, s8, s%d' % S_KQ)
        a('s_mul_i32 s8, s8, %d' % DSTR)
        a('s_lshl_b32 s7, s3, 8')
        a('s_add_u32 s8, s8, s7')
        a('s_add_u32 s8, s8, %d' % WS_D)
        a('v_and_b32 v18, 7, v0')
        a('v_lshlrev_b32 v18, 5, v18')
        a('v_lshrrev_b32 v19, 5, v0')
        a('v_lshl_add_u32 v18, v19, 4, v18')
        a('v_add_u32 v18, s8, v18')
        a('v_and_b32 v19, 15, v0')
        a('v_lshlrev_b32 v19, 2, v19')
        a('v_lshrrev_b32 v20, 5, v0')
        a('v_lshl_add_u32 v19, v20, 1, v19')
        a('v_bfe_u32 v20, v0, 4, 1')
        a('v_add_u32 v19, v19, v20')
        a('v_lshlrev_b32 v19, 1, v19')
        a('s_lshl_b32 s7, s3, 7')
        a('s_add_u32 s7, s7, %d' % L_SVEC)
        a('v_add_u32 v19, s7, v19')
        a('v_lshrrev_b32 v20, 3, v0')
        a('v_lshlrev_b32 v20, 4, v20')
        a('v_add_u32 v20, s7, v20')
        a('v_mov_b32 v21, s%d' % S_T8)
        a('v_mov_b32 v22, s%d' % S_T12)
        l = self.mpoll_begin()
        for i in range(4):
            a('global_load_dwordx4 %s, v4, %s offset:%d sc1' % (vr(HF + 4 * i, 4), sr(P_WS, 2), i * 1024))
        a('global_load_dwordx4 v[36:39], v6, %s sc1' % sr(P_WS, 2))
        a('global_load_dwordx4 v[40:43], v6, %s offset:16 sc1' % sr(P_WS, 2))
        a('s_waitcnt vmcnt(0)')
        self.untag(list(range(36, 44)) + list(range(HF, HF + 16)), 7, 8)
        self.mpoll_end(l, 8, 9, self.opt.get('sleepC', 0))
        self.stamp(9)
        XP = [44, 45, 46, 47]
        for tp in range(4):
            a('v_perm_b32 v%d, v%d, v%d, s%d' % (XP[tp], 36 + 2 * tp + 1, 36 + 2 * tp, S_SELHI))
        ag = list(range(48, 56)); au = list(range(56, 64))
        def f_dots(c):
            self.dot_paired(GB, 4, XP, ag)
            self.dot_paired(UB, 4, XP, au)
        def f_stats(c):
            F = list(range(HF, HF + 16))
            c('v_add_f32 v8, v%d, v%d' % (F[0], F[1]))
            c('v_mul_f32 v10, v%d, v%d' % (F[0], F[0]))
            c('v_add_f32 v9, v%d, v%d' % (F[2], F[3]))
            c('v_mul_f32 v11, v%d, v%d' % (F[1], F[1]))
            for i in range(2, 16, 2):
                if i >= 4:
                    c('v_add_f32 v8, v8, v%d' % F[i])
                    c('v_add_f32 v9, v9, v%d' % F[i + 1])
                c('v_fmac_f32 v10, v%d, v%d' % (F[i], F[i]))
                c('v_fmac_f32 v11, v%d, v%d' % (F[i + 1], F[i + 1]))
            c('v_add_f32 v8, v8, v9')
            c('v_add_f32 v10, v10, v11')
            self.wave_reduce([8, 10], [9, 11])
            c('v_mul_f32 v8, 0x3a800000, v8')
            c('v_mul_f32 v9, 0x3a800000, v10')
            c('v_fma_f32 v9, -v8, v8, v9')
            c('v_max_f32 v9, 0, v9')
            self.ln_finish_stats(8, 9, 10, 11, 12)
        la = self.collect(f_dots); lb = self.collect(f_stats)
        self.interleave(la, lb, 1, 1)
        self.halve([(ag[i], au[i]) for i in range(8)], 'v_permlane32_swap_b32')
        self.halve([(ag[i], ag[i + 4]) for i in range(4)], 'v_permlane16_swap_b32')
        for i in range(4):
            a('v_add_f32_dpp v%d, v%d, v%d %s' % (ag[i], ag[i], ag[i], self.dpp('row_ror:8')))
        a('s_mov_b64 exec, s[10:11]')
        a('ds_write_b128 v5, %s' % vr(ag[0], 4))
        a('s_mov_b64 exec, -1')
        a('s_waitcnt lgkmcnt(0)')
        a('s_barrier')
        wdone = self.lab('L_enp')
        a('s_cmp_eq_u32 s3, 0')
        a('s_cbranch_scc0 %s' % wdone)
        a('s_mov_b32 exec_hi, 0')
        for w in range(4):
            a('ds_read_b128 %s, v2 offset:%d' % (vr(32 + 4 * w, 4), w * 1088))
        for w in range(4):
            a('ds_read_b128 %s, v2 offset:%d' % (vr(48 + 4 * w, 4), w * 1088 + 512))
        a('s_waitcnt lgkmcnt(4)')
        for i in range(4):
            a('v_add_f32 v%d, v%d, v%d' % (32 + i, 32 + i, 36 + i))
            a('v_add_f32 v%d, v%d, v%d' % (40 + i, 40 + i, 44 + i))
        for i in range(4):
            a('v_add_f32 v%d, v%d, v%d' % (32 + i, 32 + i, 40 + i))
        a('s_waitcnt lgkmcnt(0)')
        for i in range(4):
            a('v_add_f32 v%d, v%d, v%d' % (48 + i, 48 + i, 52 + i))
            a('v_add_f32 v%d, v%d, v%d' % (56 + i, 56 + i, 60 + i))
        for i in range(4):
            a('v_add_f32 v%d, v%d, v%d' % (48 + i, 48 + i, 56 + i))
        for i in range(4):
            a('v_fma_f32 v%d, -v10, v%d, v%d' % (32 + i, 48 + i, 32 + i))
        for i in range(4):
            a('v_mul_f32 v%d, v12, v%d' % (32 + i, 32 + i))
        for i in range(4):
            a('v_and_or_b32 v%d, v%d, s%d, v21' % (32 + i, 32 + i, S_M8))
        a('global_store_dwordx4 v16, v[32:35], %s sc1' % sr(P_WS, 2))
        a('s_mov_b64 exec, -1')
        a.label(wdone)
        self.stamp(10)
        a('s_mov_b32 s9, 0xff')
        l = self.mpoll_begin()
        a('global_load_dwordx4 v[32:35], v17, %s sc1' % sr(P_WS, 2))
        a('global_load_dwordx4 v[36:39], v17, %s offset:1024 sc1' % sr(P_WS, 2))
        a('s_waitcnt vmcnt(0)')
        self.untag(list(range(32, 40)), 21, 8)
        self.mpoll_end(l, 8, 9)
        self.stamp(11)
        for i in range(4):
            a('v_add_f32 v%d, v%d, v%d' % (32 + i, 32 + i, 36 + i))
        self.halve([(32, 34), (33, 35)], 'v_permlane32_swap_b32')
        a('v_permlane16_swap_b32 v32, v33')
        self.rnd_bf16(32, 32)
        self.rnd_bf16(33, 33)
        a('v_mul_f32 v36, v32, v32')
        a('v_mov_b32 v38, 0x%08x' % f2u(0.044715))
        a('v_fma_f32 v36, v36, v38, 1.0')
        a('v_mul_f32 v36, v36, v32')
        a('v_mul_f32 v36, 0x%08x, v36' % f2u(-2.0 * 1.4426950408889634 * 0.7978845608028654))
        a('v_exp_f32 v36, v36')
        a('v_add_f32 v36, 1.0, v36')
        a('v_rcp_f32 v36, v36')
        a('v_mul_f32 v36, v32, v36')
        self.rnd_bf16(36, 36)
        a('v_mul_f32 v36, v36, v33')
        a('v_cvt_pk_bf16_f32 v36, v36, v36')
        a('ds_write_b16 v19, v36')
        a('s_waitcnt lgkmcnt(0)')
        a('ds_read_b128 v[44:47], v20')
        a('s_waitcnt lgkmcnt(0)')
        acc = list(range(32, 40))
        self.dot_paired(DB, 4, XP, acc)
        self.halve([(acc[i], acc[i + 4]) for i in range(4)], 'v_permlane32_swap_b32')
        for i in range(4):
            a('v_add_f32_dpp v%d, v%d, v%d %s' % (acc[i], acc[i], acc[i], self.dpp('row_ror:8')))
        for i in range(4):
            a('v_mov_b32 v%d, v%d' % (40 + i, acc[i]))
        for i in range(4):
            a('v_permlane16_swap_b32 v%d, v%d' % (40 + i, acc[i]))
        for i in range(4):
            a('v_add_f32 v%d, v%d, v%d' % (acc[i], acc[i], 40 + i))
        for i in range(4):
            a('v_and_or_b32 v%d, v%d, s%d, v22' % (acc[i], acc[i], S_M12))
        a('s_mov_b32 exec_lo, 0xff')
        a('s_mov_b32 exec_hi, 0xff')
        a('global_store_dwordx4 v18, %s, %s sc1' % (vr(acc[0], 4), sr(P_WS, 2)))
        a('s_mov_b64 exec, -1')
        self.stamp(12)

    def out_addr_1024(self, vd, sbase):
        a = self.a
        a('v_and_b32 v%d, 31, v0' % vd)
        a('v_lshlrev_b32 v%d, 5, v%d' % (vd, vd))
        a('v_lshrrev_b32 v%d, 5, v0' % (vd + 1))
        a('v_lshl_add_u32 v%d, v%d, 4, v%d' % (vd, vd + 1, vd))
        a('v_add_u32 v%d, %s, v%d' % (vd, sbase, vd))

    def hwave(self):
        a = self.a
        W0 = 64; WB = 128
        if self.opt.get('hprio'): a('s_setprio %d' % self.opt['hprio'])
        a('v_mov_b32 v6, %d' % L_CNT)
        a('v_mov_b32 v7, 0')
        a('v_mov_b32 v8, 0')
        a('ds_write_b64 v6, v[7:8]') if False else None
        a('ds_write_b32 v6, v7')
        a('ds_write_b32 v6, v7 offset:4')
        a('ds_write_b32 v6, v7 offset:8')
        a('ds_write_b32 v6, v7 offset:12')
        a('s_waitcnt lgkmcnt(0)')
        a('s_load_dword s%d, %s, %d' % (S_T, sr(P_WS, 2), WS_E))
        self.srd(SRD_A, P_WQ, 0x800000)
        self.srd(SRD_B, P_X, 2048)
        a('s_lshr_b32 s8, s2, 2')
        a('s_and_b32 s9, s2, 3')
        a('s_lshl_b32 s10, s9, 8')
        a('s_lshl_b32 s11, s3, 6')
        a('s_add_u32 s10, s10, s11')
        a('v_lshlrev_b32 v2, 4, v0')
        a('v_lshrrev_b32 v3, 3, v0')
        a('v_lshlrev_b32 v4, 4, v3')
        a('s_lshl_b32 s5, s10, 1')
        a('buffer_load_dwordx4 v[16:19], v2, %s, 0 offen' % sr(SRD_B, 4))
        a('buffer_load_dwordx4 v[20:23], v2, %s, 0 offen offset:1024' % sr(SRD_B, 4))
        a('buffer_load_dwordx4 v[24:27], v4, %s, s5 offen' % sr(SRD_B, 4))
        a('v_and_b32 v5, 7, v0')
        a('v_lshlrev_b32 v5, 4, v5')
        a('v_lshl_add_u32 v5, v3, 16, v5')
        a('s_lshl_b32 s4, s10, 13')
        a('s_lshl_b32 s6, s8, 7')
        a('s_add_u32 s4, s4, s6')
        for t in range(8):
            a('buffer_load_dwordx4 %s, v5, %s, s4 offen nt' % (vr(W0 + 4 * t, 4), sr(SRD_A, 4)))
            if t < 7: a('s_add_u32 s4, s4, 8192')
        a('s_lshr_b32 s4, s2, 1')
        a('s_lshl_b32 s4, s4, 5')
        a('s_lshl_b32 s4, s4, 11')
        self.srd(SRD_C, P_WO, 32 * 2048, 's4')
        a('v_lshrrev_b32 v8, 4, v0')
        a('v_lshlrev_b32 v8, 14, v8')
        a('v_and_b32 v9, 15, v0')
        a('v_lshl_add_u32 v8, v9, 4, v8')
        a('s_and_b32 s4, s2, 1')
        a('s_lshl_b32 s4, s4, 10')
        a('s_lshl_b32 s5, s3, 8')
        a('s_add_u32 s4, s4, s5')
        a('v_add_u32 v8, s4, v8')
        for t in range(8):
            if t % 2 == 0: a('s_mov_b32 s4, %d' % ((t >> 1) * 4096))
            a('buffer_load_dwordx4 %s, v8, %s, s4 offen offset:%d nt' % (vr(WB + 4 * t, 4), sr(SRD_C, 4), (t & 1) * 2048))
        a('s_barrier')
        a('s_waitcnt lgkmcnt(0)')
        self.load_tags()
        a('s_waitcnt vmcnt(16)')
        F = list(range(32, 48))
        for k in range(8):
            self.unpack(32 + 2 * k, 33 + 2 * k, 16 + k)
        mb, sb, ri = self.layernorm_stats(F, 16, 48)
        for k in range(4):
            self.unpack(32 + 2 * k, 33 + 2 * k, 24 + k)
        XP = [16, 17, 18, 19]
        self.normalize_pairs(list(range(32, 40)), mb, sb, ri, XP, 56)
        self.stamp(1)
        a('s_waitcnt vmcnt(8)')
        self.stamp(2)
        acc = list(range(32, 40))
        for tp in range(4):
            A = W0 + 8 * tp; B = A + 4
            for i in range(4):
                a('v_perm_b32 v%d, v%d, v%d, s%d' % (20 + 2 * (i & 1), B + i, A + i, S_SELLO))
                a('v_perm_b32 v%d, v%d, v%d, s%d' % (21 + 2 * (i & 1), B + i, A + i, S_SELHI))
                c0 = '0' if tp == 0 else 'v%d' % acc[2 * i]
                c1 = '0' if tp == 0 else 'v%d' % acc[2 * i + 1]
                a('v_dot2_f32_bf16 v%d, v%d, v%d, %s' % (acc[2 * i], 20 + 2 * (i & 1), XP[tp], c0))
                a('v_dot2_f32_bf16 v%d, v%d, v%d, %s' % (acc[2 * i + 1], 21 + 2 * (i & 1), XP[tp], c1))
        self.halve([(acc[i], acc[i + 4]) for i in range(4)], 'v_permlane32_swap_b32')
        self.halve([(acc[i], acc[i + 2]) for i in range(2)], 'v_permlane16_swap_b32')
        for i in range(2):
            a('v_add_f32_dpp v%d, v%d, v%d %s' % (acc[i], acc[i], acc[i], self.dpp('row_ror:8')))
        a('v_and_b32 v20, 7, v0')
        a('v_lshlrev_b32 v20, 5, v20')
        a('v_lshrrev_b32 v21, 5, v0')
        a('v_lshl_add_u32 v20, v21, 4, v20')
        a('v_bfe_u32 v21, v0, 4, 1')
        a('v_lshl_add_u32 v20, v21, 3, v20')
        a('s_lshl_b32 s4, s3, 8')
        a('s_add_u32 s4, s4, %d' % L_QRED)
        a('v_add_u32 v20, s4, v20')
        a('ds_write_b64 v20, %s' % vr(acc[0], 2))
        a('s_waitcnt lgkmcnt(0)')
        a('s_mov_b64 exec, 1')
        a('v_mov_b32 v7, 1')
        a('ds_add_rtn_u32 v8, v6, v7')
        a('s_waitcnt lgkmcnt(0)')
        a('v_readfirstlane_b32 s4, v8')
        a('s_mov_b64 exec, -1')
        notlast = self.lab('L_qnl')
        a('s_cmp_eq_u32 s4, 3')
        a('s_cbranch_scc0 %s' % notlast)
        a('s_mov_b64 exec, 0xffff')
        a('v_add_u32 v20, %d, v2' % L_QRED)
        for w in range(4):
            a('ds_read_b128 %s, v20 offset:%d' % (vr(32 + 4 * w, 4), w * 256))
        a('s_lshr_b32 s4, s8, 4')
        a('s_lshl_b32 s4, s4, 14')
        a('s_lshl_b32 s5, s9, 12')
        a('s_add_u32 s4, s4, s5')
        a('s_and_b32 s5, s8, 15')
        a('s_lshl_b32 s5, s5, 8')
        a('s_add_u32 s4, s4, s5')
        a('s_add_u32 s4, s4, %d' % WS_Q)
        a('v_add_u32 v21, s4, v2')
        a('v_mov_b32 v22, s%d' % S_T8)
        a('s_waitcnt lgkmcnt(0)')
        for i in range(4):
            a('v_add_f32 v%d, v%d, v%d' % (32 + i, 32 + i, 36 + i))
            a('v_add_f32 v%d, v%d, v%d' % (40 + i, 40 + i, 44 + i))
        for i in range(4):
            a('v_add_f32 v%d, v%d, v%d' % (32 + i, 32 + i, 40 + i))
        for i in range(4):
            a('v_and_or_b32 v%d, v%d, s%d, v22' % (32 + i, 32 + i, S_M8))
        a('global_store_dwordx4 v21, v[32:35], %s sc1' % sr(P_WS, 2))
        a('s_mov_b64 exec, -1')
        a.label(notlast)
        self.stamp(3)
        a('s_waitcnt vmcnt(0)')
        self.pair_inplace(WB, 4, 52)
        a('s_lshl_b32 s4, s%d, 14' % S_G)
        a('s_lshl_b32 s5, s3, 10')
        a('s_add_u32 s4, s4, s5')
        a('s_add_u32 s4, s4, %d' % (WS_Q + 4096))
        a('v_add_u32 v20, s4, v2')
        a('v_add_u32 v21, 8192, v20')
        a('v_mov_b32 v22, s%d' % S_T8)
        a('s_mov_b32 s4, 0xff')
        l = self.mpoll_begin()
        a('global_load_dwordx4 v[32:35], v20, %s offset:-4096 sc1' % sr(P_WS, 2))
        a('global_load_dwordx4 v[36:39], v20, %s sc1' % sr(P_WS, 2))
        a('global_load_dwordx4 v[40:43], v21, %s offset:-4096 sc1' % sr(P_WS, 2))
        a('global_load_dwordx4 v[44:47], v21, %s sc1' % sr(P_WS, 2))
        a('s_waitcnt vmcnt(0)')
        self.untag(list(range(32, 48)), 22, 23)
        self.mpoll_end(l, 23, 4)
        self.stamp(4)
        for i in range(4):
            a('v_add_f32 v%d, v%d, v%d' % (32 + i, 32 + i, 36 + i))
            a('v_add_f32 v%d, v%d, v%d' % (40 + i, 40 + i, 44 + i))
        for i in range(4):
            a('v_add_f32 v%d, v%d, v%d' % (32 + i, 32 + i, 40 + i))
        a('v_cvt_pk_bf16_f32 v32, v32, v33')
        a('v_cvt_pk_bf16_f32 v33, v34, v35')
        a('s_lshl_b32 s4, s3, 9')
        a('s_add_u32 s4, s4, %d' % L_QF)
        a('v_lshlrev_b32 v20, 3, v0')
        a('v_add_u32 v20, s4, v20')
        a('ds_write_b64 v20, v[32:33]')
        a('s_waitcnt lgkmcnt(0)')
        a('s_barrier')
        self.stamp(5)
        a('s_barrier')
        self.stamp(6)
        self.merge_publish()
        if self.opt.get('b6'): a('s_barrier')
        self.stamp(7)
        self.t2(WB)
        self.stamp(9)
        hdone = self.lab('L_hdone')
        a('s_cmp_ge_u32 s%d, 28' % S_R)
        a('s_cbranch_scc0 %s' % hdone)
        self.reducer()
        a.label(hdone)
        self.dump_stamps()
        a('s_endpgm')

    def merge_publish(self):
        a = self.a
        a('v_lshrrev_b32 v12, 5, v0')
        a('s_lshl_b32 s4, s3, 1')
        a('v_add_u32 v12, s4, v12')
        a('v_and_b32 v13, 31, v0')
        a('v_mul_u32_u24 v14, %d, v12' % HSTR)
        a('v_lshl_add_u32 v14, v13, 4, v14')
        a('v_add_u32 v14, %d, v14' % L_OP)
        a('v_lshlrev_b32 v15, 3, v12')
        a('v_add_u32 v15, %d, v15' % (L_OP + 8 * HSTR))
        for w in range(4):
            a('ds_read_b64 %s, v15 offset:%d' % (vr(16 + 2 * w, 2), w * WSTR))
        for w in range(4):
            a('ds_read_b128 %s, v14 offset:%d' % (vr(32 + 4 * w, 4), w * WSTR))
        a('s_lshl_b32 s4, s%d, 6' % S_G)
        a('s_add_u32 s4, s4, s%d' % S_C)
        a('s_mul_i32 s4, s4, %d' % ASTR)
        a('s_lshl_b32 s5, s3, 10')
        a('s_add_u32 s4, s4, s5')
        a('s_add_u32 s4, s4, %d' % WS_A)
        a('v_lshlrev_b32 v25, 4, v0')
        a('v_add_u32 v25, s4, v25')
        a('s_lshl_b32 s4, s%d, 3' % S_G)
        a('v_add_u32 v24, s4, v12')
        a('v_lshlrev_b32 v24, 10, v24')
        a('s_lshl_b32 s5, s%d, 4' % S_C)
        a('s_add_u32 s5, s5, %d' % WS_ML)
        a('v_add_u32 v24, s5, v24')
        a('v_mov_b32 v26, s%d' % S_T12)
        a('s_waitcnt lgkmcnt(4)')
        a('v_max3_f32 v27, v16, v18, v20')
        a('v_max_f32 v27, v27, v22')
        for w in range(4):
            a('v_sub_f32 v%d, v%d, v27' % (16 + 2 * w, 16 + 2 * w))
        for w in range(4):
            a('v_mul_f32 v%d, s%d, v%d' % (16 + 2 * w, S_LOG2E, 16 + 2 * w))
        for w in range(4):
            a('v_exp_f32 v%d, v%d' % (16 + 2 * w, 16 + 2 * w))
        a('v_mul_f32 v28, v16, v17')
        for w in range(1, 4):
            a('v_fmac_f32 v28, v%d, v%d' % (16 + 2 * w, 17 + 2 * w))
        a('v_and_or_b32 v36, v27, s%d, v26' % S_M12) if False else None
        a('s_waitcnt lgkmcnt(0)')
        for i in range(4):
            a('v_mul_f32 v%d, v16, v%d' % (32 + i, 32 + i))
        for w in range(1, 4):
            for i in range(4):
                a('v_fmac_f32 v%d, v%d, v%d' % (32 + i, 16 + 2 * w, 32 + 4 * w + i))
        for i in range(4):
            a('v_and_or_b32 v%d, v%d, s%d, v26' % (32 + i, 32 + i, S_M12))
        a('global_store_dwordx4 v25, v[32:35], %s sc1' % sr(P_WS, 2))
        a('v_and_or_b32 v36, v27, s%d, v26' % S_M12)
        a('v_and_or_b32 v37, v28, s%d, v26' % S_M12)
        a('v_mov_b32 v38, v36')
        a('v_mov_b32 v39, v37')
        a('v_cmp_eq_u32 vcc, 0, v13')
        a('s_and_saveexec_b64 s[4:5], vcc')
        a('global_store_dwordx4 v24, v[36:39], %s sc1' % sr(P_WS, 2))
        a('s_mov_b64 exec, -1')

    def t2(self, WB):
        a = self.a
        a('s_lshr_b32 s4, s2, 6')
        a('s_lshl_b32 s4, s4, 6')
        a('s_lshl_b32 s5, s3, 4')
        a('s_add_u32 s4, s4, s5')
        a('v_lshrrev_b32 v24, 3, v0')
        a('v_add_u32 v24, s4, v24')
        a('s_mov_b32 s5, %d' % ASTR)
        a('v_mul_lo_u32 v25, v24, s5')
        a('v_and_b32 v26, 7, v0')
        a('v_lshl_add_u32 v25, v26, 4, v25')
        a('s_lshr_b32 s5, s2, 1')
        a('s_and_b32 s5, s5, 31')
        a('s_lshl_b32 s5, s5, 7')
        a('s_add_u32 s5, s5, %d' % WS_A)
        a('v_add_u32 v25, s5, v25')
        a('v_add_u32 v30, %d, v25' % (8 * ASTR))
        a('s_lshr_b32 s4, s2, 3')
        a('s_lshl_b32 s4, s4, 10')
        a('s_add_u32 s4, s4, %d' % WS_ML)
        a('v_lshlrev_b32 v26, 4, v0')
        a('v_add_u32 v26, s4, v26')
        a('s_lshl_b32 s5, s3, 8')
        a('s_add_u32 s4, s4, s5')
        a('v_lshrrev_b32 v27, 3, v0')
        a('v_lshlrev_b32 v27, 4, v27')
        a('v_add_u32 v27, s4, v27')
        a('v_mov_b32 v28, s%d' % S_T12)
        a('s_mov_b32 s6, 0xfff')
        a('v_lshrrev_b32 v57, 4, v0')
        a('v_and_b32 v58, 7, v0')
        a('v_lshl_add_u32 v57, v57, 3, v58')
        a('v_lshlrev_b32 v57, 4, v57')
        a('s_lshl_b32 s4, s3, 2')
        a('s_add_u32 s4, s4, %d' % L_RED)
        a('v_add_u32 v59, s4, v57')
        a('v_lshrrev_b32 v60, 4, v0')
        a('v_lshlrev_b32 v60, 7, v60')
        a('v_add_u32 v60, %d, v60' % L_RED)
        a('s_mul_i32 s9, s2, %d' % BSTR)
        a('s_lshl_b32 s10, s3, 9')
        a('s_add_u32 s9, s9, s10')
        a('s_add_u32 s9, s9, %d' % WS_B)
        a('v_and_b32 v48, 15, v0')
        a('v_lshlrev_b32 v48, 5, v48')
        a('v_lshrrev_b32 v49, 5, v0')
        a('v_lshl_add_u32 v48, v49, 4, v48')
        a('v_add_u32 v48, s9, v48')
        a('v_mov_b32 v50, s%d' % S_T12)
        l = self.mpoll_begin()
        a('global_load_dwordx4 v[32:35], v26, %s sc1' % sr(P_WS, 2))
        a('global_load_dwordx4 v[36:39], v27, %s sc1' % sr(P_WS, 2))
        a('global_load_dwordx4 v[40:43], v27, %s offset:128 sc1' % sr(P_WS, 2))
        a('global_load_dwordx4 v[44:47], v25, %s sc1' % sr(P_WS, 2))
        a('global_load_dwordx4 v[52:55], v30, %s sc1' % sr(P_WS, 2))
        a('s_waitcnt vmcnt(0)')
        self.untag(list(range(32, 48)) + list(range(52, 56)), 28, 29)
        if self.opt.get('late'):
            self.late_signal(29)
        self.mpoll_end(l, 29, 6, self.opt.get('sleepA', 0))
        self.stamp(8)
        a('v_mov_b32 v56, v32')
        self.wave_reduce([56], [57], 'v_max_f32')
        a('v_sub_f32 v32, v32, v56')
        a('v_sub_f32 v36, v36, v56')
        a('v_sub_f32 v40, v40, v56')
        for r in (32, 36, 40):
            a('v_mul_f32 v%d, s%d, v%d' % (r, S_LOG2E, r))
        for r in (32, 36, 40):
            a('v_exp_f32 v%d, v%d' % (r, r))
        a('v_mul_f32 v33, v32, v33')
        for i in range(4):
            a('v_mul_f32 v%d, v36, v%d' % (44 + i, 44 + i))
        for i in range(4):
            a('v_fmac_f32 v%d, v40, v%d' % (44 + i, 52 + i))
        self.halve([(44, 46), (45, 47)], 'v_permlane32_swap_b32')
        self.halve([(44, 45)], 'v_permlane16_swap_b32')
        a('v_add_f32_dpp v44, v44, v44 %s' % self.dpp('row_ror:8'))
        a('ds_write_b32 v59, v44')
        self.wave_reduce([33], [57])
        a('v_rcp_f32 v34, v33')
        self.sync4(4)
        for t in range(8):
            a('ds_read_b128 %s, v60 offset:%d' % (vr(64 + 4 * t, 4), t * 16))
        for t in range(8):
            a('s_waitcnt lgkmcnt(%d)' % (7 - t))
            R = 64 + 4 * t
            a('v_add_f32 v%d, v%d, v%d' % (R, R, R + 1))
            a('v_add_f32 v%d, v%d, v%d' % (R + 2, R + 2, R + 3))
            a('v_add_f32 v%d, v%d, v%d' % (R, R, R + 2))
            a('v_mul_f32 v%d, v%d, v34' % (R, R))
        for tp in range(4):
            a('v_cvt_pk_bf16_f32 v%d, v%d, v%d' % (16 + tp, 64 + 8 * tp, 68 + 8 * tp))
        acc = list(range(32, 40))
        self.dot_paired(WB, 4, [16, 17, 18, 19], acc)
        self.halve([(acc[i], acc[i + 4]) for i in range(4)], 'v_permlane32_swap_b32')
        for i in range(4):
            a('v_mov_b32 v%d, v%d' % (40 + i, acc[i]))
        for i in range(4):
            a('v_permlane16_swap_b32 v%d, v%d' % (40 + i, acc[i]))
        for i in range(4):
            a('v_add_f32 v%d, v%d, v%d' % (acc[i], acc[i], 40 + i))
        for i in range(4):
            a('v_and_or_b32 v%d, v%d, s%d, v50' % (acc[i], acc[i], S_M12))
        a('s_mov_b32 exec_lo, 0x0000ffff')
        a('s_mov_b32 exec_hi, 0x0000ffff')
        a('global_store_dwordx4 v48, %s, %s sc1' % (vr(acc[0], 4), sr(P_WS, 2)))
        a('s_mov_b64 exec, -1')
        if self.opt.get('late'):
            a('v_mov_b32 v62, %d' % (L_CNT + 12))
            a('v_mov_b32 v63, 1')
            a('s_mov_b64 exec, 1')
            a('ds_add_u32 v62, v63')
            a('s_mov_b64 exec, -1')

    def late_signal(self, vbad):
        a = self.a
        sk = self.lab('L_ls')
        a('s_or_b32 s7, s%d, s3' % S_SPIN)
        a('s_cmp_eq_u32 s7, 0')
        a('s_cbranch_scc0 %s' % sk)
        a('v_and_b32 v31, s6, v%d' % vbad)
        a('v_cmp_ne_u32 vcc, 0, v31')
        a('s_bcnt1_i32_b64 s7, vcc')
        a('s_cmp_le_u32 s7, %d' % self.opt['late'])
        a('s_cselect_b32 s7, 2, 1')
        a('v_mov_b32 v31, s7')
        a('v_mov_b32 v61, %d' % (L_CNT + 8))
        a('s_mov_b64 s[10:11], exec')
        a('s_mov_b64 exec, 1')
        a('ds_write_b32 v61, v31')
        a('s_mov_b64 exec, s[10:11]')
        a.label(sk)

    def reduce_lines_B(self):
        a = self.a
        nin = 4
        a('s_lshr_b32 s5, s%d, 4' % S_IDX)
        a('s_lshl_b32 s4, s3, 6')
        a('s_add_u32 s4, s4, s5')
        a('s_mul_i32 s4, s4, %d' % BSTR)
        a('s_and_b32 s5, s%d, 15' % S_IDX)
        a('s_lshl_b32 s5, s5, 7')
        a('s_add_u32 s4, s4, s5')
        a('s_add_u32 s4, s4, %d' % WS_B)
        a('v_lshrrev_b32 v20, 3, v0')
        a('s_mov_b32 s5, %d' % (2 * BSTR))
        a('v_mul_lo_u32 v20, v20, s5')
        a('v_and_b32 v21, 7, v0')
        a('v_lshl_add_u32 v20, v21, 4, v20')
        a('v_add_u32 v20, s4, v20')
        for t in range(1, nin):
            a('v_add_u32 v%d, %d, v20' % (8 + t, t * 16 * BSTR))
        a('v_mov_b32 v22, s%d' % S_T12)
        a('s_mov_b32 s6, 0xfff')
        a('v_lshrrev_b32 v24, 4, v0')
        a('v_and_b32 v25, 7, v0')
        a('v_lshl_add_u32 v24, v25, 2, v24')
        a('v_lshlrev_b32 v24, 4, v24')
        a('s_lshl_b32 s4, s3, 2')
        a('s_add_u32 s4, s4, %d' % (L_RED + 512))
        a('v_add_u32 v24, s4, v24')
        a('v_and_b32 v26, 31, v0')
        a('v_lshlrev_b32 v26, 4, v26')
        a('v_add_u32 v26, %d, v26' % (L_RED + 512))
        l = self.mpoll_begin()
        for t in range(nin):
            a('global_load_dwordx4 %s, v%d, %s sc1' % (vr(64 + 4 * t, 4), 20 if t == 0 else 8 + t, sr(P_WS, 2)))
        a('s_waitcnt vmcnt(0)')
        self.untag(list(range(64, 64 + 4 * nin)), 22, 23)
        self.mpoll_end(l, 23, 6)
        for i in range(4):
            a('v_add_f32 v%d, v%d, v%d' % (64 + i, 64 + i, 68 + i))
            a('v_add_f32 v%d, v%d, v%d' % (72 + i, 72 + i, 76 + i))
        for i in range(4):
            a('v_add_f32 v%d, v%d, v%d' % (64 + i, 64 + i, 72 + i))
        self.halve([(64, 66), (65, 67)], 'v_permlane32_swap_b32')
        self.halve([(64, 65)], 'v_permlane16_swap_b32')
        a('v_add_f32_dpp v64, v64, v64 %s' % self.dpp('row_ror:8'))
        a('ds_write_b32 v24, v64')
        a('s_waitcnt lgkmcnt(0)')
        a('s_barrier')
        a('ds_read_b128 v[36:39], v26')
        a('s_waitcnt lgkmcnt(0)')
        a('v_add_f32 v36, v36, v37')
        a('v_add_f32 v38, v38, v39')
        a('v_add_f32 v40, v36, v38')

    def reduce_lines_D(self):
        a = self.a
        nin = 7
        a('s_lshr_b32 s4, s%d, 3' % S_IDX)
        a('s_mul_i32 s4, s4, %d' % DSTR)
        a('s_and_b32 s5, s%d, 7' % S_IDX)
        a('s_lshl_b32 s5, s5, 7')
        a('s_add_u32 s4, s4, s5')
        a('s_add_u32 s4, s4, %d' % WS_D)
        a('v_lshrrev_b32 v20, 3, v0')
        a('s_mov_b32 s5, %d' % (4 * DSTR))
        a('v_mul_lo_u32 v20, v20, s5')
        a('v_and_b32 v21, 7, v0')
        a('v_lshl_add_u32 v20, v21, 4, v20')
        a('v_add_u32 v20, s4, v20')
        for t in range(1, nin):
            a('v_add_u32 v%d, %d, v20' % (8 + t, t * 32 * DSTR))
        a('v_mov_b32 v22, s%d' % S_T12)
        a('s_mov_b32 s6, 0xfff')
        l = self.mpoll_begin()
        for t in range(nin):
            a('global_load_dwordx4 %s, v%d, %s sc1' % (vr(64 + 4 * t, 4), 20 if t == 0 else 8 + t, sr(P_WS, 2)))
        a('s_waitcnt vmcnt(0)')
        self.untag(list(range(64, 64 + 4 * nin)), 22, 23)
        self.mpoll_end(l, 23, 6)
        for i in range(4):
            a('v_add_f32 v%d, v%d, v%d' % (64 + i, 64 + i, 68 + i))
            a('v_add_f32 v%d, v%d, v%d' % (72 + i, 72 + i, 76 + i))
            a('v_add_f32 v%d, v%d, v%d' % (80 + i, 80 + i, 84 + i))
        for i in range(4):
            a('v_add_f32 v%d, v%d, v%d' % (64 + i, 64 + i, 72 + i))
            a('v_add_f32 v%d, v%d, v%d' % (80 + i, 80 + i, 88 + i))
        for i in range(4):
            a('v_add_f32 v%d, v%d, v%d' % (64 + i, 64 + i, 80 + i))
        self.halve([(64, 66), (65, 67)], 'v_permlane32_swap_b32')
        self.halve([(64, 65)], 'v_permlane16_swap_b32')
        a('v_add_f32_dpp v64, v64, v64 %s' % self.dpp('row_ror:8'))

    def reducer(self):
        a = self.a
        a('s_sub_u32 s4, s%d, 28' % S_R)
        a('s_lshl_b32 s4, s4, 3')
        a('s_and_b32 s5, s2, 7')
        a('s_add_u32 s%d, s4, s5' % S_IDX)
        self.srd(SRD_B, P_X, 2048)
        a('v_and_b32 v50, 31, v0')
        a('s_lshl_b32 s4, s%d, 5' % S_IDX)
        a('v_add_u32 v50, s4, v50')
        a('v_lshlrev_b32 v50, 1, v50')
        a('buffer_load_ushort v50, v50, %s, 0 offen' % sr(SRD_B, 4))
        self.reduce_lines_B()
        self.stamp(10)
        fin = self.lab('L_fin')
        a('s_cmp_eq_u32 s3, 0')
        a('s_cbranch_scc0 %s' % fin)
        a('v_lshlrev_b32 v50, 16, v50')
        self.rnd_bf16(40, 40)
        a('v_add_f32 v40, v50, v40')
        self.rnd_bf16(51, 40)
        a('v_or_b32 v36, s%d, v51' % S_T16)
        a('s_lshl_b32 s4, s%d, 7' % S_IDX)
        a('s_add_u32 s4, s4, %d' % WS_C)
        a('v_lshlrev_b32 v20, 2, v0')
        a('v_add_u32 v20, s4, v20')
        a('v_mov_b32_dpp v37, v36 %s' % self.dpp('quad_perm:[1,1,1,1]'))
        a('v_mov_b32_dpp v38, v36 %s' % self.dpp('quad_perm:[2,2,2,2]'))
        a('v_mov_b32_dpp v39, v36 %s' % self.dpp('quad_perm:[3,3,3,3]'))
        a('s_mov_b32 exec_lo, 0x11111111')
        a('s_mov_b32 exec_hi, 0')
        a('global_store_dwordx4 v20, v[36:39], %s sc1' % sr(P_WS, 2))
        a('s_mov_b64 exec, -1')
        self.stamp(11)
        a('v_and_b32 v52, 7, v0')
        a('v_lshlrev_b32 v52, 2, v52')
        a('v_lshrrev_b32 v53, 4, v0')
        a('v_add_u32 v52, v52, v53')
        a('v_lshlrev_b32 v53, 2, v52')
        a('ds_bpermute_b32 v54, v53, v51')
        self.reduce_lines_D()
        self.stamp(12)
        a('s_waitcnt lgkmcnt(0)')
        self.rnd_bf16(64, 64)
        a('v_add_f32 v64, v54, v64')
        a('v_cvt_pk_bf16_f32 v64, v64, v64')
        a('s_lshl_b32 s4, s%d, 6' % S_IDX)
        a('v_lshlrev_b32 v20, 1, v52')
        a('v_add_u32 v20, s4, v20')
        a('s_mov_b32 exec_lo, 0x00ff00ff')
        a('s_mov_b32 exec_hi, 0x00ff00ff')
        a('global_store_short v20, v64, %s' % sr(P_OUT, 2))
        noe = self.lab('L_noe')
        a('s_cmp_eq_u32 s%d, 0' % S_IDX)
        a('s_cbranch_scc0 %s' % noe)
        a('s_mov_b64 exec, 1')
        a('v_mov_b32 v20, %d' % WS_E)
        a('v_mov_b32 v21, s%d' % S_T)
        a('global_store_dword v20, v21, %s' % sr(P_WS, 2))
        a.label(noe)
        a('s_mov_b64 exec, -1')
        self.stamp(13)
        a.label(fin)

if __name__ == '__main__':
    ap = argparse.ArgumentParser()
    ap.add_argument('-o', default='k3.s')
    ap.add_argument('--diag', action='store_true')
    ap.add_argument('--dbgts', action='store_true')
    ap.add_argument('--opt', default='')
    args = ap.parse_args()
    opt = {}
    for kv in args.opt.split(','):
        if kv:
            k, v = kv.split('='); opt[k] = int(v)
    g = Gen(diag=args.diag or args.dbgts, dbgts=args.dbgts, opt=opt)
    txt = g.build()
    hdr = open('sequential_preLN__gqa_block_cached__geglu_ffn__decode.s.ref').read().split('; Override')[0]
    open(args.o, 'w').write(hdr + txt)
    print('wrote', args.o, 'lines', txt.count(chr(10)), 'nops', g.a.nnops)
```

```python
import sys, argparse, struct
sys.path.insert(0, 'gen')
from asmlib import Asm
import gen3
from gen3 import Gen as Base, vr, sr, f2u, KNAME
from gen3 import (P_X, P_K, P_V, P_WQ, P_WO, P_BX, P_WG, P_WU, P_WD, P_OUT, P_DBG, P_WS,
                  S_T, S_G, S_C, S_R, S_IDX, S_T8, S_T12, S_T16, SRD_A, SRD_B, SRD_C,
                  S_SELLO, S_SELHI, S_SCALE, S_LOG2E, S_TS, S_SPIN, S_HI16, S_M8, S_M12, S_KQ, S_RING, SPIN_LIMIT)

WS_E = 0
WS_Q = 0x1000
WS_ML = 0x20000
WS_A = 0x40000;  ASTR = 4096 + 128
WS_B = 0x150000; BSTR = 4096 + 128
WS_C = 0x268000
WS_EE = 0x270000
WS_D = 0x290000; DSTR = 1024 + 128
WS_TS = 0x8000000
WS_CNT = 0x18000
L_QF = 98304
L_QRED = L_QF + 2048
L_CNT = L_QRED + 1024
L_OP = L_CNT + 64
HSTR = 528
WSTR = 8 * HSTR + 64
L_GU = L_OP + 4 * WSTR
L_GST = L_GU + 4 * 1088
L_SVEC = L_GST + 64
L_MB = L_SVEC + 512
L_TAKE = L_MB + 384
L_END = L_TAKE + 64
LT_RED = 0
LT_VEC = 4096
LT_W = 4096 + 512
L_FLAG_OFF = 16
for k in ('WS_E','WS_Q','WS_ML','WS_A','ASTR','WS_B','BSTR','WS_C','WS_EE','WS_D','DSTR','WS_TS','L_QF','L_QRED','L_CNT','L_OP','HSTR','WSTR','L_END'):
    setattr(gen3, k, globals()[k])
NWV = 224
GSTEP = NWV * 8192
S_NG, S_I, S_KO, S_J, S_WVO, S_DONE, S_GUO, S_FW = 8, 9, 10, 11, 12, 13, 14, 15
OOBOFF = 0x2000000
SENT = 0xffffffff

class Gen(Base):
    def build(self):
        a = self.a
        a.raw('; @launch grid=(256,1,1) block=(512,1,1) lds=%d' % L_END)
        a.raw('.amdgcn_target "amdgcn-amd-amdhsa--gfx950"')
        a.raw('.text')
        a.raw('.globl %s\n.p2align 8\n.type %s,@function\n%s:' % (KNAME, KNAME, KNAME))
        a('s_cmp_ge_u32 s2, 256')
        a('s_cbranch_scc1 L_exit')
        if self.diag:
            for k in range(16): a('s_mov_b64 %s, 0' % sr(S_TS + 2 * k, 2))
        self.stamp(0)
        a('s_load_dwordx16 s[16:31], s[0:1], 0')
        a('s_load_dwordx8 s[32:39], s[0:1], 64')
        a('v_lshrrev_b32 v1, 6, v0')
        a('v_and_b32 v0, 63, v0')
        a('v_readfirstlane_b32 s3, v1')
        a('s_lshr_b32 s%d, s2, 3' % S_R)
        a('s_and_b32 s%d, s%d, 3' % (S_G, S_R))
        a('s_lshr_b32 s4, s%d, 2' % S_R)
        a('s_lshl_b32 s4, s4, 3')
        a('s_and_b32 s5, s2, 7')
        a('s_add_u32 s%d, s4, s5' % S_C)
        a('s_mov_b32 s%d, 0x05040100' % S_SELLO)
        a('s_mov_b32 s%d, 0x07060302' % S_SELHI)
        a('s_mov_b32 s%d, 0x3db504f3' % S_SCALE)
        a('s_mov_b32 s%d, 0x3fb8aa3b' % S_LOG2E)
        a('s_mov_b32 s%d, 0xffff0000' % S_HI16)
        a('s_mov_b32 s%d, 0xffffff00' % S_M8)
        a('s_mov_b32 s%d, 0xfffff000' % S_M12)
        a('s_waitcnt lgkmcnt(0)')
        a('s_cmp_ge_u32 s3, 4')
        a('s_cbranch_scc1 L_hiwave')
        self.hwave()
        a.label('L_hiwave')
        a('s_cmp_ge_u32 s2, 224')
        a('s_cbranch_scc1 L_thi')
        self.swave()
        self.tcu()
        a.label('L_abort')
        a('s_endpgm')
        a.label('L_exit')
        a('s_endpgm')
        a.raw('.section .rodata,"a"\n.p2align 6\n.amdhsa_kernel %s' % KNAME)
        a.raw('  .amdhsa_next_free_vgpr 256\n  .amdhsa_next_free_sgpr 102\n  .amdhsa_accum_offset 256')
        a.raw('  .amdhsa_group_segment_fixed_size 0\n  .amdhsa_kernarg_size 96\n  .amdhsa_user_sgpr_count 2')
        a.raw('  .amdhsa_user_sgpr_kernarg_segment_ptr 1\n  .amdhsa_system_sgpr_workgroup_id_x 1\n.end_amdhsa_kernel')
        return a.text()

    def swave(self):
        a = self.a
        vKsrc = [2, 3, 4, 5]; vVsrc = 6; vKrd = [7, 8, 9, 10]
        vM, vL, vAl, vNM = 12, 13, 14, 11
        Q = 16; D = 32; S = 40; P = 48; T = 52
        ACC = 64; KT = 96; VT = 128; VR = 160
        a('s_load_dword s%d, %s, %d' % (S_T, sr(P_WS, 2), WS_E))
        a('s_sub_u32 s3, s3, 4')
        a('s_mul_i32 s4, s3, 56')
        a('s_add_u32 s4, s4, s%d' % S_C)
        a('s_lshl_b32 s%d, s4, 13' % S_WVO)
        a('s_lshl_b32 s4, s%d, 24' % S_G)
        for srd, ptr in ((SRD_A, P_K), (SRD_B, P_V)):
            a('s_add_u32 s%d, s%d, s4' % (srd, ptr))
            a('s_addc_u32 s%d, s%d, 0' % (srd + 1, ptr + 1))
            a('s_and_b32 s%d, s%d, 0xffff' % (srd + 1, srd + 1))
            a('s_mov_b32 s%d, 0x1000000' % (srd + 2))
            a('s_mov_b32 s%d, 0x20000' % (srd + 3))
        self.ffn_ids()
        a('v_lshrrev_b32 v56, 3, v0')
        a('s_mov_b32 s5, %d' % (8 * 7168))
        a('v_mul_lo_u32 v56, v56, s5')
        a('v_and_b32 v57, 7, v0')
        a('v_lshl_add_u32 v56, v57, 4, v56')
        a('s_lshl_b32 s6, s%d, 8' % S_KQ)
        a('s_lshl_b32 s7, s3, 6')
        a('s_add_u32 s6, s6, s7')
        a('s_mul_i32 s7, s6, 7168')
        a('s_lshl_b32 s4, s%d, 7' % S_IDX)
        a('s_add_u32 s%d, s7, s4' % S_GUO)
        self.srd(SRD_C, P_WG, 1024 * 7168)
        a('s_mov_b32 s%d, 0' % S_FW)
        a('s_mul_i32 s%d, s3, 24576' % S_RING)
        a('v_lshrrev_b32 v14, 4, v0')
        a('v_and_b32 v15, 15, v0')
        for i in range(4):
            a('v_lshlrev_b32 v11, 2, v14')
            a('v_add_u32 v11, %d, v11' % i)
            a('v_xor_b32 v11, v11, v15')
            a('v_lshlrev_b32 v11, 4, v11')
            a('v_lshl_add_u32 v%d, v14, 8, v11' % vKsrc[i])
        a('v_lshlrev_b32 v%d, 4, v0' % vVsrc)
        a('v_and_b32 v16, 3, v15')
        a('v_lshrrev_b32 v17, 2, v15')
        a('v_lshl_add_u32 v18, v16, 2, v17')
        a('v_lshlrev_b32 v18, 8, v18')
        a('v_add_u32 v18, s%d, v18' % S_RING)
        a('v_xor_b32 v19, v14, v16')
        for s in range(4):
            a('v_xor_b32 v20, %d, v17' % s)
            a('v_lshl_add_u32 v20, v20, 2, v19')
            a('v_lshl_add_u32 v%d, v20, 4, v18' % vKrd[s])
        a('v_and_b32 v21, 7, v15')
        a('v_lshlrev_b32 v21, 8, v21')
        a('v_lshl_add_u32 v21, v14, 4, v21')
        a('v_add_u32 v21, %d, v21' % L_QF)
        a('s_mul_i32 s6, s3, %d' % WSTR)
        a('s_add_u32 s6, s6, %d' % L_OP)
        a('v_mul_u32_u24 v22, %d, v15' % HSTR)
        a('v_lshl_add_u32 v22, v14, 7, v22')
        a('v_add_u32 v1, s6, v22')
        a('v_mov_b32 v15, v21')
        a('s_barrier')
        def issueK(slot):
            a('s_add_u32 s5, s%d, 4096' % S_KO)
            a('s_add_u32 m0, s%d, %d' % (S_RING, slot * 8192))
            for ii in range(4):
                a('buffer_load_dwordx4 v%d, %s, s%d offen offset:%d nt lds' % (vKsrc[ii], sr(SRD_A, 4), S_KO, ii * 1024))
            a('s_add_u32 m0, s%d, %d' % (S_RING, slot * 8192 + 4096))
            for ii in range(4):
                a('buffer_load_dwordx4 v%d, %s, s5 offen offset:%d nt lds' % (vKsrc[ii], sr(SRD_A, 4), ii * 1024))
        def issueV(slot):
            a('s_add_u32 s5, s%d, 4096' % S_KO)
            for t in range(8):
                a('buffer_load_dwordx4 %s, v%d, %s, s%d offen offset:%d nt' % (
                    vr(VR + slot * 32 + 4 * t, 4), vVsrc, sr(SRD_B, 4), S_KO if t < 4 else 5, (t & 3) * 1024))
        NS = self.opt.get('ns', 5)
        a('s_mov_b32 s%d, s%d' % (S_KO, S_WVO))
        for i in range(3):
            issueK(i); issueV(i)
            a('s_add_u32 s%d, s%d, %d' % (S_KO, S_KO, GSTEP))
        a('s_mov_b32 s%d, 3' % S_J)
        a('s_mov_b32 s%d, 0' % S_DONE)
        a('s_mov_b32 s%d, 1000' % S_NG)
        a('v_mov_b32 v60, %d' % L_TAKE)
        a('v_mov_b32 v61, 1')
        def next_offset():
            st = self.lab('L_st'); dn = self.lab('L_dn'); fin = self.lab('L_nf')
            a('s_cmp_lt_u32 s%d, %d' % (S_J, NS))
            a('s_cbranch_scc1 %s' % st)
            a('s_cmp_eq_u32 s%d, 1' % S_DONE)
            a('s_cbranch_scc1 %s' % dn)
            a('s_mov_b64 exec, 1')
            a('ds_add_rtn_u32 v62, v60, v61')
            a('s_waitcnt lgkmcnt(0)')
            a('v_lshlrev_b32 v62, 2, v62')
            a('v_add_u32 v62, %d, v62' % L_MB)
            lp = self.lab('L_mbp')
            a('s_mov_b32 s%d, 0' % S_SPIN)
            a.label(lp)
            a('ds_read_b32 v63, v62')
            a('s_waitcnt lgkmcnt(0)')
            a('v_readfirstlane_b32 s4, v63')
            got = self.lab('L_got')
            a('s_cmp_lg_u32 s4, 0x%x' % SENT)
            a('s_cbranch_scc1 %s' % got)
            a('s_sleep 1')
            a('s_add_u32 s%d, s%d, 1' % (S_SPIN, S_SPIN))
            a('s_cmp_lt_u32 s%d, %d' % (S_SPIN, SPIN_LIMIT * 4))
            a('s_cbranch_scc1 %s' % lp)
            a('s_branch L_abort')
            a.label(got)
            a('s_mov_b64 exec, -1')
            a('s_mov_b32 s%d, s4' % S_KO)
            a('s_cmp_eq_u32 s4, 0x%x' % OOBOFF)
            a('s_cbranch_scc0 %s' % fin)
            a('s_mov_b32 s%d, 1' % S_DONE)
            a('s_mov_b32 s%d, s%d' % (S_NG, S_J))
            a('s_branch %s' % fin)
            a.label(dn)
            a('s_mov_b32 s%d, 0x%x' % (S_KO, OOBOFF))
            a('s_branch %s' % fin)
            a.label(st)
            a('s_mul_i32 s%d, s%d, %d' % (S_KO, S_J, GSTEP))
            a('s_add_u32 s%d, s%d, s%d' % (S_KO, S_KO, S_WVO))
            a.label(fin)
            a('s_add_u32 s%d, s%d, 1' % (S_J, S_J))
        self.stamp(1)
        a('s_barrier')
        self.stamp(2)
        for s in range(4):
            a('ds_read_b128 %s, v15 offset:%d' % (vr(Q + 4 * s, 4), s * 64))
        a('v_mov_b32 v%d, 0xff800000' % vM)
        a('v_mov_b32 v%d, 0' % vL)
        for i in range(32):
            a('v_mov_b32 v%d, 0' % (ACC + i))
        a('s_waitcnt lgkmcnt(0)')
        self.load_tags()
        a('s_mov_b32 s%d, 0' % S_I)
        a.label('L_sloop')
        for slot in range(3):
            next_offset()
            a('s_waitcnt vmcnt(40)')
            for u in range(2):
                for s in range(4):
                    a('ds_read_b128 %s, v%d offset:%d' % (vr(KT + 16 * u + 4 * s, 4), vKrd[s], slot * 8192 + u * 4096))
            a('s_waitcnt lgkmcnt(4)')
            for s in range(4):
                a('v_mfma_f32_16x16x32_bf16 %s, %s, %s, %s' % (vr(D, 4), vr(KT + 4 * s, 4), vr(Q + 4 * s, 4), '0' if s == 0 else vr(D, 4)))
            a('s_waitcnt lgkmcnt(0)')
            for s in range(4):
                a('v_mfma_f32_16x16x32_bf16 %s, %s, %s, %s' % (vr(D + 4, 4), vr(KT + 16 + 4 * s, 4), vr(Q + 4 * s, 4), '0' if s == 0 else vr(D + 4, 4)))
            issueK(slot)
            for k in range(4):
                a('v_cvt_pk_bf16_f32 v%d, v%d, v%d' % (T + k, D + 2 * k, D + 2 * k + 1))
            for k in range(4):
                self.unpack(S + 2 * k, S + 2 * k + 1, T + k)
            for k in range(8):
                a('v_mul_f32 v%d, s%d, v%d' % (S + k, S_SCALE, S + k))
            for k in range(4):
                a('v_cvt_pk_bf16_f32 v%d, v%d, v%d' % (T + k, S + 2 * k, S + 2 * k + 1))
            for k in range(4):
                self.unpack(S + 2 * k, S + 2 * k + 1, T + k)
            a('v_max3_f32 v%d, v%d, v%d, v%d' % (T, S, S + 1, S + 2))
            a('v_max3_f32 v%d, v%d, v%d, v%d' % (T + 1, S + 3, S + 4, S + 5))
            a('v_max3_f32 v%d, v%d, v%d, v%d' % (T, T, S + 6, S + 7))
            a('v_max3_f32 v%d, v%d, v%d, v%d' % (T, T, T + 1, vM))
            for sw in ('v_permlane16_swap_b32', 'v_permlane32_swap_b32'):
                a('v_mov_b32 v%d, v%d' % (T + 1, T))
                a('%s v%d, v%d' % (sw, T + 1, T))
                a('v_max_f32 v%d, v%d, v%d' % (T, T, T + 1))
            a('v_sub_f32 v%d, v%d, v%d' % (T + 1, vM, T))
            a('v_mul_f32 v%d, s%d, v%d' % (T + 1, S_LOG2E, T + 1))
            a('v_mul_f32 v%d, s%d, v%d' % (vNM, S_LOG2E, T))
            a('v_exp_f32 v%d, v%d' % (vAl, T + 1))
            a('v_mov_b32 v%d, v%d' % (vM, T))
            for k in range(8):
                a('v_fma_f32 v%d, v%d, s%d, -v%d' % (S + k, S + k, S_LOG2E, vNM))
            for k in range(8):
                a('v_exp_f32 v%d, v%d' % (S + k, S + k))
            a('v_add_f32 v%d, v%d, v%d' % (T, S, S + 1))
            a('v_add_f32 v%d, v%d, v%d' % (T + 1, S + 2, S + 3))
            a('v_add_f32 v%d, v%d, v%d' % (T + 2, S + 4, S + 5))
            a('v_add_f32 v%d, v%d, v%d' % (T + 3, S + 6, S + 7))
            a('v_add_f32 v%d, v%d, v%d' % (T, T, T + 1))
            a('v_add_f32 v%d, v%d, v%d' % (T + 2, T + 2, T + 3))
            a('v_add_f32 v%d, v%d, v%d' % (T, T, T + 2))
            a('v_fma_f32 v%d, v%d, v%d, v%d' % (vL, vL, vAl, T))
            for k in range(4):
                a('v_cvt_pk_bf16_f32 v%d, v%d, v%d' % (P + k, S + 2 * k, S + 2 * k + 1))
            for k in range(16):
                a('v_pk_mul_f32 %s, %s, %s op_sel_hi:[1,0]' % (vr(ACC + 2 * k, 2), vr(ACC + 2 * k, 2), vr(vAl, 2)))
            a('s_waitcnt vmcnt(40)')
            R = VR + slot * 32
            for j in range(8):
                for rho in range(4):
                    a('v_perm_b32 v%d, v%d, v%d, s%d' % (VT + 4 * j + rho, R + 4 * (2 * rho + 1) + (j >> 1), R + 4 * (2 * rho) + (j >> 1), S_SELHI if (j & 1) else S_SELLO))
            issueV(slot)
            for j in range(8):
                a('v_mfma_f32_16x16x32_bf16 %s, %s, %s, %s' % (vr(ACC + 4 * j, 4), vr(VT + 4 * j, 4), vr(P, 4), vr(ACC + 4 * j, 4)))
            a('s_add_u32 s%d, s%d, 1' % (S_I, S_I))
            a('s_cmp_ge_u32 s%d, s%d' % (S_I, S_NG))
            if slot < 2:
                a('s_cbranch_scc1 L_sdone')
            else:
                a('s_cbranch_scc0 L_sloop')
        a.label('L_sdone')
        self.stamp(5)
        a('s_nop 7')
        for sw in ('v_permlane16_swap_b32', 'v_permlane32_swap_b32'):
            a('v_mov_b32 v%d, v%d' % (T + 1, vL))
            a('%s v%d, v%d' % (sw, T + 1, vL))
            a('v_add_f32 v%d, v%d, v%d' % (vL, vL, T + 1))
        a('v_and_b32 v%d, 8, v0' % T)
        a('v_cmp_eq_u32 vcc, 0, v%d' % T)
        a('s_and_saveexec_b64 s[4:5], vcc')
        a('s_nop 7')
        for j in range(8):
            a('ds_write_b128 v1, %s offset:%d' % (vr(ACC + 4 * j, 4), j * 16))
        a('s_mov_b64 exec, 0xff')
        a('s_mul_i32 s6, s3, %d' % WSTR)
        a('s_add_u32 s6, s6, %d' % (L_OP + 8 * HSTR))
        a('v_lshlrev_b32 v%d, 3, v0' % T)
        a('v_add_u32 v%d, s6, v%d' % (T, T))
        a('ds_write_b64 v%d, %s' % (T, vr(vM, 2)))
        a('s_mov_b64 exec, -1')
        a('s_waitcnt lgkmcnt(0)')
        self.stamp(6)
        a('s_barrier')
        a('s_waitcnt vmcnt(0)')
        a('s_barrier')
        self.gu()
        self.dump_stamps(4)
        a('s_endpgm')

    def ffn_ids(self):
        a = self.a
        a('s_and_b32 s4, s2, 7')
        a('s_mul_i32 s4, s4, 7')
        a('s_lshr_b32 s5, s%d, 2' % S_R)
        a('s_add_u32 s%d, s4, s5' % S_IDX)
        a('s_and_b32 s%d, s%d, 3' % (S_KQ, S_R))

    def gu(self):
        a = self.a
        GB, UB = 64, 96
        HF = 128
        VR = 160
        W = self.opt.get('win', 64); n = 0
        for mat in range(2):
            if mat == 1:
                a('s_mov_b32 s%d, s%d' % (SRD_C, P_WU))
                a('s_and_b32 s%d, s%d, 0xffff' % (SRD_C + 1, P_WU + 1))
            a('s_mov_b32 s5, s%d' % S_GUO)
            for t in range(8):
                if n >= W: a('s_waitcnt vmcnt(%d)' % (W - 1))
                n += 1
                a('buffer_load_dwordx4 %s, v56, %s, s5 offen nt' % (vr(VR + 32 * mat + 4 * t, 4), sr(SRD_C, 4)))
                if t < 7: a('s_add_u32 s5, s5, 7168')
        a('s_lshl_b32 s6, s%d, 8' % S_KQ)
        a('s_lshl_b32 s7, s3, 6')
        a('s_add_u32 s6, s6, s7')
        a('v_and_b32 v5, 7, v0')
        a('v_lshlrev_b32 v5, 5, v5')
        a('v_lshrrev_b32 v6, 5, v0')
        a('v_lshl_add_u32 v5, v6, 8, v5')
        a('v_bfe_u32 v6, v0, 4, 1')
        a('v_lshl_add_u32 v5, v6, 4, v5')
        a('s_mul_i32 s8, s3, 1088')
        a('s_add_u32 s8, s8, %d' % L_GU)
        a('v_add_u32 v5, s8, v5')
        a('v_lshlrev_b32 v2, 4, v0')
        a('s_and_b32 s8, s2, 7')
        a('s_lshl_b32 s8, s8, 12')
        a('s_add_u32 s8, s8, %d' % WS_C)
        a('v_add_u32 v4, s8, v2')
        a('v_lshrrev_b32 v6, 3, v0')
        a('v_lshlrev_b32 v6, 5, v6')
        a('s_lshl_b32 s9, s6, 2')
        a('s_add_u32 s8, s8, s9')
        a('v_add_u32 v6, s8, v6')
        a('v_mov_b32 v7, s%d' % S_T16)
        a('s_mov_b32 s9, 0xffff')
        self.stamp(8)
        a('s_waitcnt vmcnt(8)')
        def pair_to(dst, src):
            for tp in range(4):
                A = src + 8 * tp; B = A + 4
                for i in range(4):
                    a('v_perm_b32 v%d, v%d, v%d, s%d' % (dst + 8 * tp + i, B + i, A + i, S_SELLO))
                    a('v_perm_b32 v%d, v%d, v%d, s%d' % (dst + 8 * tp + 4 + i, B + i, A + i, S_SELHI))
        pair_to(GB, 160)
        a('s_waitcnt vmcnt(0)')
        a('s_barrier')
        pair_to(UB, 192)
        a('s_mov_b32 s8, 0x3f803f80')
        csg = list(range(16, 24)); csu = list(range(24, 32))
        self.dot_paired(GB, 4, None, csg, xconst='s8')
        self.dot_paired(UB, 4, None, csu, xconst='s8')
        self.halve([(csg[i], csu[i]) for i in range(8)], 'v_permlane32_swap_b32')
        self.halve([(csg[i], csg[i + 4]) for i in range(4)], 'v_permlane16_swap_b32')
        for i in range(4):
            a('v_add_f32_dpp v%d, v%d, v%d %s' % (csg[i], csg[i], csg[i], self.dpp('row_ror:8')))
        a('s_mov_b32 s12, 0x00ff00ff')
        a('s_mov_b32 s13, 0x00ff00ff')
        a('s_mov_b64 exec, s[12:13]')
        a('ds_write_b128 v5, %s offset:512' % vr(csg[0], 4))
        a('s_mov_b64 exec, -1')
        self.stamp(9)
        l = self.mpoll_begin()
        for i in range(4):
            a('global_load_dwordx4 %s, v4, %s offset:%d sc1' % (vr(HF + 4 * i, 4), sr(P_WS, 2), i * 1024))
        a('global_load_dwordx4 v[36:39], v6, %s sc1' % sr(P_WS, 2))
        a('global_load_dwordx4 v[40:43], v6, %s offset:16 sc1' % sr(P_WS, 2))
        a('s_waitcnt vmcnt(0)')
        self.untag(list(range(36, 44)) + list(range(HF, HF + 16)), 7, 8)
        self.mpoll_end(l, 8, 9, self.opt.get('sleepC', 0))
        self.stamp(10)
        XP = [44, 45, 46, 47]
        for tp in range(4):
            a('v_perm_b32 v%d, v%d, v%d, s%d' % (XP[tp], 36 + 2 * tp + 1, 36 + 2 * tp, S_SELHI))
        ag = list(range(48, 56)); au = list(range(56, 64))
        def f_dots(c):
            self.dot_paired(GB, 4, XP, ag)
            self.dot_paired(UB, 4, XP, au)
        def f_stats(c):
            F = list(range(HF, HF + 16))
            c('v_add_f32 v8, v%d, v%d' % (F[0], F[1]))
            c('v_mul_f32 v10, v%d, v%d' % (F[0], F[0]))
            c('v_add_f32 v9, v%d, v%d' % (F[2], F[3]))
            c('v_mul_f32 v11, v%d, v%d' % (F[1], F[1]))
            for i in range(2, 16, 2):
                if i >= 4:
                    c('v_add_f32 v8, v8, v%d' % F[i])
                    c('v_add_f32 v9, v9, v%d' % F[i + 1])
                c('v_fmac_f32 v10, v%d, v%d' % (F[i], F[i]))
                c('v_fmac_f32 v11, v%d, v%d' % (F[i + 1], F[i + 1]))
            c('v_add_f32 v8, v8, v9')
            c('v_add_f32 v10, v10, v11')
            self.wave_reduce([8, 10], [9, 11])
            c('v_mul_f32 v8, 0x3a800000, v8')
            c('v_mul_f32 v9, 0x3a800000, v10')
            c('v_fma_f32 v9, -v8, v8, v9')
            c('v_max_f32 v9, 0, v9')
            self.ln_finish_stats(8, 9, 10, 11, 12)
        la = self.collect(f_dots); lb = self.collect(f_stats)
        self.interleave(la, lb, 1, 1)
        self.halve([(ag[i], au[i]) for i in range(8)], 'v_permlane32_swap_b32')
        self.halve([(ag[i], ag[i + 4]) for i in range(4)], 'v_permlane16_swap_b32')
        for i in range(4):
            a('v_add_f32_dpp v%d, v%d, v%d %s' % (ag[i], ag[i], ag[i], self.dpp('row_ror:8')))
        a('s_mov_b64 exec, s[12:13]')
        a('ds_write_b128 v5, %s' % vr(ag[0], 4))
        a('s_mov_b64 exec, 1')
        a('v_mov_b32 v11, v12')
        a('v_mov_b32 v3, %d' % L_GST)
        a('ds_write_b64 v3, v[10:11]')
        a('s_mov_b64 exec, -1')
        a('s_waitcnt lgkmcnt(0)')
        self.stamp(11)
        a('s_barrier')

    def merge_publish(self):
        a = self.a
        a('v_lshrrev_b32 v12, 5, v0')
        a('s_lshl_b32 s4, s3, 1')
        a('v_add_u32 v12, s4, v12')
        a('v_and_b32 v13, 31, v0')
        a('v_mul_u32_u24 v14, %d, v12' % HSTR)
        a('v_lshl_add_u32 v14, v13, 4, v14')
        a('v_add_u32 v14, %d, v14' % L_OP)
        a('v_lshlrev_b32 v15, 3, v12')
        a('v_add_u32 v15, %d, v15' % (L_OP + 8 * HSTR))
        for w in range(4):
            a('ds_read_b64 %s, v15 offset:%d' % (vr(16 + 2 * w, 2), w * WSTR))
        for w in range(4):
            a('ds_read_b128 %s, v14 offset:%d' % (vr(32 + 4 * w, 4), w * WSTR))
        a('v_and_b32 v40, 7, v0') if False else None
        a('s_lshl_b32 s4, s%d, 6' % S_G)
        a('s_add_u32 s4, s4, s%d' % S_C)
        a('s_mul_i32 s4, s4, %d' % ASTR)
        a('s_add_u32 s4, s4, %d' % WS_A)
        a('s_lshl_b32 s5, s3, 10')
        a('s_add_u32 s5, s5, s4')
        a('v_lshlrev_b32 v25, 4, v0')
        a('v_add_u32 v25, s5, v25')
        a('v_mov_b32 v26, s%d' % S_T12)
        a('s_waitcnt lgkmcnt(4)')
        a('v_max3_f32 v27, v16, v18, v20')
        a('v_max_f32 v27, v27, v22')
        for w in range(4):
            a('v_sub_f32 v%d, v%d, v27' % (16 + 2 * w, 16 + 2 * w))
        for w in range(4):
            a('v_mul_f32 v%d, s%d, v%d' % (16 + 2 * w, S_LOG2E, 16 + 2 * w))
        for w in range(4):
            a('v_exp_f32 v%d, v%d' % (16 + 2 * w, 16 + 2 * w))
        a('v_mul_f32 v28, v16, v17')
        for w in range(1, 4):
            a('v_fmac_f32 v28, v%d, v%d' % (16 + 2 * w, 17 + 2 * w))
        a('s_waitcnt lgkmcnt(0)')
        for i in range(4):
            a('v_mul_f32 v%d, v16, v%d' % (32 + i, 32 + i))
        for w in range(1, 4):
            for i in range(4):
                a('v_fmac_f32 v%d, v%d, v%d' % (32 + i, 16 + 2 * w, 32 + 4 * w + i))
        for i in range(4):
            a('v_and_or_b32 v%d, v%d, s%d, v26' % (32 + i, 32 + i, S_M12))
        a('global_store_dwordx4 v25, v[32:35], %s sc1' % sr(P_WS, 2))
        a('v_and_or_b32 v36, v27, s%d, v26' % S_M12)
        a('v_and_or_b32 v37, v28, s%d, v26' % S_M12)
        a('v_mov_b32 v38, v36')
        a('v_mov_b32 v39, v37')
        a('v_lshlrev_b32 v24, 4, v12')
        a('s_add_u32 s4, s4, 4096')
        a('v_add_u32 v24, s4, v24')
        a('s_mov_b32 exec_lo, 1')
        a('s_mov_b32 exec_hi, 1')
        a('global_store_dwordx4 v24, v[36:39], %s sc1' % sr(P_WS, 2))
        a('s_mov_b64 exec, -1')

    def qstage_produce(self, nyounger):
        a = self.a
        W0 = 64
        a('s_waitcnt vmcnt(%d)' % (8 + nyounger))
        F = list(range(32, 48))
        for k in range(8):
            self.unpack(32 + 2 * k, 33 + 2 * k, 16 + k)
        mb, sb, ri = self.layernorm_stats(F, 16, 48)
        for k in range(4):
            self.unpack(32 + 2 * k, 33 + 2 * k, 24 + k)
        XP = [16, 17, 18, 19]
        self.normalize_pairs(list(range(32, 40)), mb, sb, ri, XP, 56)
        self.stamp(1)
        a('s_waitcnt vmcnt(%d)' % nyounger)
        self.stamp(2)
        acc = list(range(32, 40))
        for tp in range(4):
            A = W0 + 8 * tp; B = A + 4
            for i in range(4):
                a('v_perm_b32 v%d, v%d, v%d, s%d' % (20 + 2 * (i & 1), B + i, A + i, S_SELLO))
                a('v_perm_b32 v%d, v%d, v%d, s%d' % (21 + 2 * (i & 1), B + i, A + i, S_SELHI))
                c0 = '0' if tp == 0 else 'v%d' % acc[2 * i]
                c1 = '0' if tp == 0 else 'v%d' % acc[2 * i + 1]
                a('v_dot2_f32_bf16 v%d, v%d, v%d, %s' % (acc[2 * i], 20 + 2 * (i & 1), XP[tp], c0))
                a('v_dot2_f32_bf16 v%d, v%d, v%d, %s' % (acc[2 * i + 1], 21 + 2 * (i & 1), XP[tp], c1))
        self.halve([(acc[i], acc[i + 4]) for i in range(4)], 'v_permlane32_swap_b32')
        self.halve([(acc[i], acc[i + 2]) for i in range(2)], 'v_permlane16_swap_b32')
        for i in range(2):
            a('v_add_f32_dpp v%d, v%d, v%d %s' % (acc[i], acc[i], acc[i], self.dpp('row_ror:8')))
        a('v_and_b32 v20, 7, v0')
        a('v_lshlrev_b32 v20, 5, v20')
        a('v_lshrrev_b32 v21, 5, v0')
        a('v_lshl_add_u32 v20, v21, 4, v20')
        a('v_bfe_u32 v21, v0, 4, 1')
        a('v_lshl_add_u32 v20, v21, 3, v20')
        a('s_lshl_b32 s4, s3, 8')
        a('s_add_u32 s4, s4, %d' % L_QRED)
        a('v_add_u32 v20, s4, v20')
        a('ds_write_b64 v20, %s' % vr(acc[0], 2))
        a('s_waitcnt lgkmcnt(0)')
        a('s_mov_b64 exec, 1')
        a('v_mov_b32 v7, 1')
        a('ds_add_rtn_u32 v8, v6, v7')
        a('s_waitcnt lgkmcnt(0)')
        a('v_readfirstlane_b32 s4, v8')
        a('s_mov_b64 exec, -1')
        notlast = self.lab('L_qnl')
        a('s_cmp_eq_u32 s4, 3')
        a('s_cbranch_scc0 %s' % notlast)
        a('s_mov_b64 exec, 0xffff')
        a('v_add_u32 v20, %d, v2' % L_QRED)
        for w in range(4):
            a('ds_read_b128 %s, v20 offset:%d' % (vr(32 + 4 * w, 4), w * 256))
        a('s_lshr_b32 s4, s14, 4')
        a('s_lshl_b32 s4, s4, 14')
        a('s_lshl_b32 s5, s15, 12')
        a('s_add_u32 s4, s4, s5')
        a('s_and_b32 s5, s14, 15')
        a('s_lshl_b32 s5, s5, 8')
        a('s_add_u32 s4, s4, s5')
        a('s_add_u32 s4, s4, %d' % WS_Q)
        a('v_add_u32 v21, s4, v2')
        a('v_mov_b32 v22, s%d' % S_T8)
        noc = self.lab('L_noc')
        a('s_and_b32 s5, s2, 63')
        a('s_cmp_eq_u32 s5, 0')
        a('s_cbranch_scc0 %s' % noc)
        a('s_lshl_b32 s5, s2, 2')
        a('s_add_u32 s5, s5, %d' % WS_CNT)
        a('v_mov_b32 v23, s5')
        a('v_mov_b32 v24, 0')
        a('global_store_dword v23, v24, %s sc1' % sr(P_WS, 2))
        a('s_waitcnt vmcnt(0)')
        a.label(noc)
        a('s_waitcnt lgkmcnt(0)')
        for i in range(4):
            a('v_add_f32 v%d, v%d, v%d' % (32 + i, 32 + i, 36 + i))
            a('v_add_f32 v%d, v%d, v%d' % (40 + i, 40 + i, 44 + i))
        for i in range(4):
            a('v_add_f32 v%d, v%d, v%d' % (32 + i, 32 + i, 40 + i))
        for i in range(4):
            a('v_and_or_b32 v%d, v%d, s%d, v22' % (32 + i, 32 + i, S_M8))
        a('global_store_dwordx4 v21, v[32:35], %s sc1' % sr(P_WS, 2))
        a('s_mov_b64 exec, -1')
        a.label(notlast)
        self.stamp(3)

    def qstage_loads(self):
        a = self.a
        W0 = 64
        a('v_mov_b32 v6, %d' % L_CNT)
        a('v_mov_b32 v7, 0')
        a('ds_write_b32 v6, v7')
        a('ds_write_b32 v6, v7 offset:%d' % L_FLAG_OFF)
        a('v_lshlrev_b32 v8, 2, v0')
        a('v_add_u32 v8, %d, v8' % L_MB)
        a('v_mov_b32 v9, -1')
        a('ds_write_b32 v8, v9')
        a('ds_write_b32 v8, v9 offset:128')
        a('v_mov_b32 v8, %d' % L_TAKE)
        a('ds_write_b32 v8, v7')
        a('s_waitcnt lgkmcnt(0)')
        a('s_load_dword s%d, %s, %d' % (S_T, sr(P_WS, 2), WS_E))
        self.srd(SRD_A, P_WQ, 0x800000)
        self.srd(SRD_B, P_X, 2048)
        a('s_lshr_b32 s14, s2, 2')
        a('s_and_b32 s15, s2, 3')
        a('s_lshl_b32 s10, s15, 8')
        a('s_lshl_b32 s11, s3, 6')
        a('s_add_u32 s10, s10, s11')
        a('v_lshlrev_b32 v2, 4, v0')
        a('v_lshrrev_b32 v3, 3, v0')
        a('v_lshlrev_b32 v4, 4, v3')
        a('s_lshl_b32 s5, s10, 1')
        a('buffer_load_dwordx4 v[16:19], v2, %s, 0 offen' % sr(SRD_B, 4))
        a('buffer_load_dwordx4 v[20:23], v2, %s, 0 offen offset:1024' % sr(SRD_B, 4))
        a('buffer_load_dwordx4 v[24:27], v4, %s, s5 offen' % sr(SRD_B, 4))
        a('v_and_b32 v5, 7, v0')
        a('v_lshlrev_b32 v5, 4, v5')
        a('v_lshl_add_u32 v5, v3, 16, v5')
        a('s_lshl_b32 s4, s10, 13')
        a('s_lshl_b32 s6, s14, 7')
        a('s_add_u32 s4, s4, s6')
        for t in range(8):
            a('buffer_load_dwordx4 %s, v5, %s, s4 offen nt' % (vr(W0 + 4 * t, 4), sr(SRD_A, 4)))
            if t < 7: a('s_add_u32 s4, s4, 8192')

    def hwave(self):
        a = self.a
        if self.opt.get('hprio'): a('s_setprio %d' % self.opt['hprio'])
        self.qstage_loads()
        a('s_cmp_ge_u32 s2, 224')
        a('s_cbranch_scc1 L_tlo')
        a('s_barrier')
        a('s_waitcnt lgkmcnt(0)')
        self.load_tags()
        self.qstage_produce(0)
        a('s_lshl_b32 s4, s%d, 14' % S_G)
        a('s_lshl_b32 s5, s3, 10')
        a('s_add_u32 s4, s4, s5')
        a('s_add_u32 s4, s4, %d' % (WS_Q + 4096))
        a('v_add_u32 v20, s4, v2')
        a('v_add_u32 v21, 8192, v20')
        a('v_mov_b32 v22, s%d' % S_T8)
        a('s_mov_b32 s4, 0xff')
        l = self.mpoll_begin()
        a('global_load_dwordx4 v[32:35], v20, %s offset:-4096 sc1' % sr(P_WS, 2))
        a('global_load_dwordx4 v[36:39], v20, %s sc1' % sr(P_WS, 2))
        a('global_load_dwordx4 v[40:43], v21, %s offset:-4096 sc1' % sr(P_WS, 2))
        a('global_load_dwordx4 v[44:47], v21, %s sc1' % sr(P_WS, 2))
        a('s_waitcnt vmcnt(0)')
        self.untag(list(range(32, 48)), 22, 23)
        self.mpoll_end(l, 23, 4)
        self.stamp(4)
        for i in range(4):
            a('v_add_f32 v%d, v%d, v%d' % (32 + i, 32 + i, 36 + i))
            a('v_add_f32 v%d, v%d, v%d' % (40 + i, 40 + i, 44 + i))
        for i in range(4):
            a('v_add_f32 v%d, v%d, v%d' % (32 + i, 32 + i, 40 + i))
        a('v_cvt_pk_bf16_f32 v32, v32, v33')
        a('v_cvt_pk_bf16_f32 v33, v34, v35')
        a('s_lshl_b32 s4, s3, 9')
        a('s_add_u32 s4, s4, %d' % L_QF)
        a('v_lshlrev_b32 v20, 3, v0')
        a('v_add_u32 v20, s4, v20')
        a('ds_write_b64 v20, v[32:33]')
        a('s_waitcnt lgkmcnt(0)')
        a('s_barrier')
        self.stamp(5)
        DB = 128
        self.ffn_ids()
        a('s_lshl_b32 s8, s%d, 17' % S_IDX)
        self.srd(SRD_C, P_WD, 64 * 2048, 's8')
        a('v_lshrrev_b32 v50, 3, v0')
        a('v_lshlrev_b32 v50, 14, v50')
        a('v_and_b32 v51, 7, v0')
        a('v_lshl_add_u32 v50, v51, 4, v50')
        a('s_lshl_b32 s8, s%d, 9' % S_KQ)
        a('s_lshl_b32 s9, s3, 7')
        a('s_add_u32 s8, s8, s9')
        a('v_add_u32 v50, s8, v50')
        self.scheduler()
        a('s_barrier')
        self.stamp(6)
        self.merge_publish()
        a('s_barrier')
        self.stamp(7)
        if not self.opt.get('downlate', 1):
            for t in range(8):
                if t % 2 == 0: a('s_mov_b32 s8, %d' % ((t >> 1) * 4096))
                a('buffer_load_dwordx4 %s, v50, %s, s8 offen offset:%d nt' % (vr(DB + 4 * t, 4), sr(SRD_C, 4), (t & 1) * 2048))
        a('v_lshlrev_b32 v2, 4, v0')
        a('s_lshl_b32 s8, s%d, 11' % S_IDX)
        a('s_add_u32 s8, s8, %d' % WS_EE)
        a('v_add_u32 v17, s8, v2')
        a('s_lshl_b32 s7, s%d, 9' % S_KQ)
        a('v_add_u32 v16, s7, v17')
        a('s_lshl_b32 s8, s%d, 2' % S_IDX)
        a('s_add_u32 s8, s8, s%d' % S_KQ)
        a('s_mul_i32 s8, s8, %d' % DSTR)
        a('s_lshl_b32 s7, s3, 8')
        a('s_add_u32 s8, s8, s7')
        a('s_add_u32 s8, s8, %d' % WS_D)
        a('v_and_b32 v18, 7, v0')
        a('v_lshlrev_b32 v18, 5, v18')
        a('v_lshrrev_b32 v19, 5, v0')
        a('v_lshl_add_u32 v18, v19, 4, v18')
        a('v_add_u32 v18, s8, v18')
        a('v_and_b32 v19, 15, v0')
        a('v_lshlrev_b32 v19, 2, v19')
        a('v_lshrrev_b32 v20, 5, v0')
        a('v_lshl_add_u32 v19, v20, 1, v19')
        a('v_bfe_u32 v20, v0, 4, 1')
        a('v_add_u32 v19, v19, v20')
        a('v_lshlrev_b32 v19, 1, v19')
        a('s_lshl_b32 s7, s3, 7')
        a('s_add_u32 s7, s7, %d' % L_SVEC)
        a('v_add_u32 v19, s7, v19')
        a('v_lshrrev_b32 v20, 3, v0')
        a('v_lshlrev_b32 v20, 4, v20')
        a('v_add_u32 v20, s7, v20')
        a('v_mov_b32 v21, s%d' % S_T8)
        a('v_mov_b32 v22, s%d' % S_T12)
        a('v_add_u32 v23, %d, v2' % L_GU)
        a('v_mov_b32 v24, %d' % L_GST)
        if not self.opt.get('downlate', 1): a('s_waitcnt vmcnt(0)')
        a('s_barrier')
        if self.opt.get('downlate', 1):
            for t in range(8):
                if t % 2 == 0: a('s_mov_b32 s8, %d' % ((t >> 1) * 4096))
                a('buffer_load_dwordx4 %s, v50, %s, s8 offen offset:%d nt' % (vr(DB + 4 * t, 4), sr(SRD_C, 4), (t & 1) * 2048))
            a('s_waitcnt vmcnt(0)')
        self.pair_inplace(DB, 4, 8)
        self.stamp(9)
        a('s_barrier')
        wdone = self.lab('L_enp')
        a('s_cmp_eq_u32 s3, 0')
        a('s_cbranch_scc0 %s' % wdone)
        a('s_mov_b32 exec_hi, 0')
        a('ds_read_b64 v[10:11], v24')
        for w in range(4):
            a('ds_read_b128 %s, v23 offset:%d' % (vr(32 + 4 * w, 4), w * 1088))
        for w in range(4):
            a('ds_read_b128 %s, v23 offset:%d' % (vr(48 + 4 * w, 4), w * 1088 + 512))
        a('s_waitcnt lgkmcnt(4)')
        for i in range(4):
            a('v_add_f32 v%d, v%d, v%d' % (32 + i, 32 + i, 36 + i))
            a('v_add_f32 v%d, v%d, v%d' % (40 + i, 40 + i, 44 + i))
        for i in range(4):
            a('v_add_f32 v%d, v%d, v%d' % (32 + i, 32 + i, 40 + i))
        a('s_waitcnt lgkmcnt(0)')
        for i in range(4):
            a('v_add_f32 v%d, v%d, v%d' % (48 + i, 48 + i, 52 + i))
            a('v_add_f32 v%d, v%d, v%d' % (56 + i, 56 + i, 60 + i))
        for i in range(4):
            a('v_add_f32 v%d, v%d, v%d' % (48 + i, 48 + i, 56 + i))
        for i in range(4):
            a('v_fma_f32 v%d, -v10, v%d, v%d' % (32 + i, 48 + i, 32 + i))
        for i in range(4):
            a('v_mul_f32 v%d, v11, v%d' % (32 + i, 32 + i))
        for i in range(4):
            a('v_and_or_b32 v%d, v%d, s%d, v21' % (32 + i, 32 + i, S_M8))
        if self.opt.get('dbl', 1): a('global_store_dwordx4 v16, v[32:35], %s' % sr(P_WS, 2))
        a('global_store_dwordx4 v16, v[32:35], %s sc1' % sr(P_WS, 2))
        a('s_mov_b64 exec, -1')
        a.label(wdone)
        self.stamp(11)
        a('s_mov_b32 s9, 0xff')
        l = self.mpoll_begin()
        a('global_load_dwordx4 v[32:35], v17, %s sc1' % sr(P_WS, 2))
        a('global_load_dwordx4 v[36:39], v17, %s offset:1024 sc1' % sr(P_WS, 2))
        a('s_waitcnt vmcnt(0)')
        self.untag(list(range(32, 40)), 21, 8)
        self.mpoll_end(l, 8, 9)
        self.stamp(12)
        for i in range(4):
            a('v_add_f32 v%d, v%d, v%d' % (32 + i, 32 + i, 36 + i))
        self.halve([(32, 34), (33, 35)], 'v_permlane32_swap_b32')
        a('v_permlane16_swap_b32 v32, v33')
        self.rnd_bf16(32, 32)
        self.rnd_bf16(33, 33)
        a('v_mul_f32 v36, v32, v32')
        a('v_mov_b32 v38, 0x%08x' % f2u(0.044715))
        a('v_fma_f32 v36, v36, v38, 1.0')
        a('v_mul_f32 v36, v36, v32')
        a('v_mul_f32 v36, 0x%08x, v36' % f2u(-2.0 * 1.4426950408889634 * 0.7978845608028654))
        a('v_exp_f32 v36, v36')
        a('v_add_f32 v36, 1.0, v36')
        a('v_rcp_f32 v36, v36')
        a('v_mul_f32 v36, v32, v36')
        self.rnd_bf16(36, 36)
        a('v_mul_f32 v36, v36, v33')
        a('v_cvt_pk_bf16_f32 v36, v36, v36')
        a('ds_write_b16 v19, v36')
        a('s_waitcnt lgkmcnt(0)')
        a('ds_read_b128 v[44:47], v20')
        a('s_waitcnt lgkmcnt(0)')
        acc = list(range(32, 40))
        self.dot_paired(DB, 4, [44, 45, 46, 47], acc)
        self.halve([(acc[i], acc[i + 4]) for i in range(4)], 'v_permlane32_swap_b32')
        for i in range(4):
            a('v_add_f32_dpp v%d, v%d, v%d %s' % (acc[i], acc[i], acc[i], self.dpp('row_ror:8')))
        for i in range(4):
            a('v_mov_b32 v%d, v%d' % (40 + i, acc[i]))
        for i in range(4):
            a('v_permlane16_swap_b32 v%d, v%d' % (40 + i, acc[i]))
        for i in range(4):
            a('v_add_f32 v%d, v%d, v%d' % (acc[i], acc[i], 40 + i))
        for i in range(4):
            a('v_and_or_b32 v%d, v%d, s%d, v22' % (acc[i], acc[i], S_M12))
        a('s_mov_b32 exec_lo, 0xff')
        a('s_mov_b32 exec_hi, 0xff')
        a('global_store_dwordx4 v18, %s, %s sc1' % (vr(acc[0], 4), sr(P_WS, 2)))
        a('s_mov_b64 exec, -1')
        self.stamp(13)
        self.dump_stamps()
        a('s_endpgm')

    def scheduler(self):
        a = self.a
        NS = self.opt.get('ns', 5); B = self.opt.get('batch', 2); LOW = self.opt.get('low', 3)
        NDYN = 2048 - NS * NWV
        end = self.lab('L_schend')
        a('s_cmp_eq_u32 s3, 0')
        a('s_cbranch_scc0 %s' % end)
        a('s_mov_b64 exec, 1')
        a('s_lshl_b32 s4, s%d, 8' % S_G)
        a('s_add_u32 s4, s4, %d' % WS_CNT)
        a('v_mov_b32 v32, s4')
        a('v_mov_b32 v33, %d' % B)
        a('v_mov_b32 v34, %d' % L_TAKE)
        a('s_mov_b32 s8, 0')
        a('s_mov_b32 s%d, 0' % S_SPIN)
        lp = self.lab('L_sch')
        a.label(lp)
        a('ds_read_b32 v35, v34')
        a('s_waitcnt lgkmcnt(0)')
        a('v_readfirstlane_b32 s9, v35')
        a('s_sub_u32 s9, s8, s9')
        need = self.lab('L_need')
        a('s_cmp_le_i32 s9, %d' % LOW)
        a('s_cbranch_scc1 %s' % need)
        a('s_sleep 2')
        a('s_add_u32 s%d, s%d, 1' % (S_SPIN, S_SPIN))
        a('s_cmp_lt_u32 s%d, %d' % (S_SPIN, SPIN_LIMIT * 4))
        a('s_cbranch_scc1 %s' % lp)
        a('s_branch L_abort')
        a.label(need)
        a('global_atomic_add v36, v32, v33, %s sc0 sc1' % sr(P_WS, 2))
        a('s_waitcnt vmcnt(0)')
        a('v_readfirstlane_b32 s10, v36')
        for k in range(B):
            a('s_add_u32 s11, s10, %d' % k)
            a('s_cmp_lt_u32 s11, %d' % NDYN)
            a('s_add_u32 s11, s11, %d' % (NS * NWV)) if False else None
            a('s_cselect_b32 s12, 1, 0')
            a('s_add_u32 s11, s11, %d' % (NS * NWV))
            a('s_lshl_b32 s11, s11, 13')
            a('s_cmp_eq_u32 s12, 1')
            a('s_cselect_b32 s11, s11, 0x%x' % OOBOFF)
            a('s_lshl_b32 s13, s8, 2')
            a('s_add_u32 s13, s13, %d' % (L_MB + 4 * k))
            a('v_mov_b32 v37, s13')
            a('v_mov_b32 v38, s11')
            a('ds_write_b32 v37, v38')
        a('s_add_u32 s8, s8, %d' % B)
        a('s_add_u32 s10, s10, %d' % B)
        a('s_cmp_lt_u32 s10, %d' % NDYN)
        a('s_cbranch_scc0 %s' % (end + 'f'))
        a('s_cmp_lt_u32 s8, 88')
        a('s_cbranch_scc1 %s' % lp)
        a.label(end + 'f')
        a('s_lshl_b32 s13, s8, 2')
        a('s_add_u32 s13, s13, %d' % L_MB)
        a('v_mov_b32 v37, s13')
        a('v_mov_b32 v38, 0x%x' % OOBOFF)
        for k in range(6):
            a('ds_write_b32 v37, v38 offset:%d' % (4 * k))
        a('v_mov_b32 v37, %d' % (L_CNT + L_FLAG_OFF))
        a('v_mov_b32 v38, 1')
        a('ds_write_b32 v37, v38')
        a('s_waitcnt lgkmcnt(0)')
        a('s_mov_b64 exec, -1')
        a.label(end)

    def t_wo_loads(self):
        a = self.a
        a('s_sub_u32 s%d, s2, 224' % S_IDX)
        a('s_lshl_b32 s4, s%d, 18' % S_IDX)
        self.srd(SRD_C, P_WO, 128 * 2048, 's4')
        a('v_lshrrev_b32 v8, 4, v0')
        a('v_lshlrev_b32 v8, 16, v8')
        a('v_and_b32 v9, 15, v0')
        a('v_lshl_add_u32 v8, v9, 4, v8')
        a('s_lshl_b32 s5, s3, 8')
        a('v_add_u32 v8, s5, v8')
        for t in range(32):
            if t % 2 == 0: a('s_mov_b32 s4, %d' % ((t >> 1) * 4096))
            a('buffer_load_dwordx4 %s, v8, %s, s4 offen offset:%d nt' % (vr(128 + 4 * t, 4), sr(SRD_C, 4), (t & 1) * 2048))

    def tcu(self):
        a = self.a
        a.label('L_thi')
        a('v_lshlrev_b32 v8, 3, v0')
        a('v_mov_b32 v10, 0')
        a('v_mov_b32 v11, 0')
        a('v_lshlrev_b32 v8, 5, v0')
        a('ds_write_b32 v8, v10 offset:28')
        a('ds_write_b32 v8, v10 offset:%d' % (64 * 32 + 28))
        a('s_waitcnt lgkmcnt(0)')
        a('s_load_dword s%d, %s, %d' % (S_T, sr(P_WS, 2), WS_E))
        a('s_barrier')
        a('s_barrier')
        self.t_wo_loads()
        a('s_waitcnt lgkmcnt(0)')
        self.load_tags()
        a('s_branch L_tall')
        a.label('L_tlo')
        a('s_barrier')
        a('s_waitcnt lgkmcnt(0)')
        self.load_tags()
        self.qstage_produce(0)
        a('s_barrier')
        self.t_wo_loads()
        a.label('L_tall')
        a('s_waitcnt vmcnt(0)')
        self.pair_inplace(128, 16, 52)
        self.stamp(5)
        a('v_mov_b32 v28, s%d' % S_T12)
        a('s_mov_b32 s6, 0xfff')
        a('s_mul_i32 s9, s%d, %d' % (S_IDX, BSTR))
        a('s_lshl_b32 s10, s3, 9')
        a('s_add_u32 s9, s9, s10')
        a('s_add_u32 s9, s9, %d' % WS_B)
        a('v_and_b32 v48, 15, v0')
        a('v_lshlrev_b32 v48, 5, v48')
        a('v_lshrrev_b32 v49, 5, v0')
        a('v_lshl_add_u32 v48, v49, 4, v48')
        a('v_add_u32 v48, s9, v48')
        a('v_mov_b32 v50, s%d' % S_T12)
        a('v_lshrrev_b32 v62, 4, v0')
        a('v_lshlrev_b32 v62, 6, v62')
        a('v_add_u32 v62, %d, v62' % LT_VEC)
        w7 = self.lab('L_w7'); w7d = self.lab('L_w7d')
        a('s_lshr_b32 s4, s%d, 3' % S_IDX)
        a('s_lshl_b32 s4, s4, 6')
        a('s_and_b32 s5, s%d, 7' % S_IDX)
        a('s_cmp_eq_u32 s3, 7')
        a('s_cbranch_scc1 %s' % w7)
        a('s_lshl_b32 s7, s3, 3')
        a('s_add_u32 s4, s4, s7')
        a('v_lshrrev_b32 v24, 5, v0')
        a('v_add_u32 v24, s4, v24')
        a('s_mov_b32 s7, %d' % ASTR)
        a('v_mul_lo_u32 v25, v24, s7')
        a('v_and_b32 v26, 31, v0')
        a('v_lshl_add_u32 v25, v26, 4, v25')
        a('s_lshl_b32 s5, s5, 9')
        a('s_add_u32 s5, s5, %d' % WS_A)
        a('v_add_u32 v25, s5, v25')
        for t in range(1, 4):
            a('v_add_u32 v%d, %d, v25' % (12 + t, t * 2 * ASTR))
        a('v_lshrrev_b32 v27, 5, v0')
        a('v_lshlrev_b32 v27, 4, v27')
        a('s_lshl_b32 s4, s3, 5')
        a('s_add_u32 s4, s4, %d' % LT_W)
        a('v_add_u32 v27, s4, v27')
        a('v_bfe_u32 v57, v0, 3, 2')
        a('v_lshlrev_b32 v57, 5, v57')
        a('v_lshrrev_b32 v58, 5, v0')
        a('v_lshl_add_u32 v57, v58, 4, v57')
        a('v_and_b32 v58, 7, v0')
        a('v_add_u32 v57, v57, v58')
        a('v_lshlrev_b32 v59, 5, v57')
        a('s_lshl_b32 s4, s3, 2')
        a('v_add_u32 v59, s4, v59')
        a('s_lshl_b32 s4, s3, 6')
        a('v_add_u32 v60, s4, v0')
        a('v_lshlrev_b32 v61, 1, v60')
        a('v_add_u32 v61, %d, v61' % LT_VEC)
        a('v_lshlrev_b32 v60, 5, v60')
        l = self.mpoll_begin()
        for t in range(4):
            a('global_load_dwordx4 %s, v%d, %s sc1' % (vr(80 + 4 * t, 4), 25 if t == 0 else 12 + t, sr(P_WS, 2)))
        a('s_waitcnt vmcnt(0)')
        self.untag(list(range(80, 96)), 28, 29)
        self.mpoll_end(l, 29, 6, self.opt.get('sleepA', 0))
        self.stamp(8)
        a('s_barrier')
        self.stamp(6)
        a('ds_read_b128 v[64:67], v27')
        a('s_waitcnt lgkmcnt(0)')
        for i in range(4):
            a('v_mul_f32 v%d, v64, v%d' % (44 + i, 80 + i))
        for t in range(1, 4):
            for i in range(4):
                a('v_fmac_f32 v%d, v%d, v%d' % (44 + i, 64 + t, 80 + 4 * t + i))
        self.halve([(44, 46), (45, 47)], 'v_permlane32_swap_b32')
        a('ds_write_b32 v59, v44')
        a('ds_write_b32 v59, v45 offset:256')
        a('s_branch %s' % w7d)
        a.label(w7)
        a('v_min_u32 v26, 55, v0')
        a('v_add_u32 v26, s4, v26')
        a('s_mov_b32 s7, %d' % ASTR)
        a('v_mul_lo_u32 v26, v26, s7')
        a('s_lshl_b32 s5, s5, 4')
        a('s_add_u32 s5, s5, %d' % (WS_A + 4096))
        a('v_add_u32 v26, s5, v26')
        a('v_and_b32 v27, 56, v0')
        a('v_and_b32 v24, 1, v0')
        a('v_lshl_add_u32 v27, v24, 2, v27')
        a('v_bfe_u32 v24, v0, 1, 2')
        a('v_add_u32 v27, v27, v24')
        a('v_lshlrev_b32 v27, 2, v27')
        a('v_add_u32 v27, %d, v27' % LT_W)
        l = self.mpoll_begin()
        a('global_load_dwordx4 v[32:35], v26, %s sc1' % sr(P_WS, 2))
        a('s_waitcnt vmcnt(0)')
        self.untag(list(range(32, 36)), 28, 29)
        self.mpoll_end(l, 29, 6)
        self.stamp(8)
        a('v_mov_b32 v56, v32')
        self.wave_reduce([56], [57], 'v_max_f32')
        a('v_sub_f32 v32, v32, v56')
        a('v_mul_f32 v32, s%d, v32' % S_LOG2E)
        a('v_exp_f32 v32, v32')
        a('v_cmp_gt_u32 vcc, 56, v0')
        a('v_mul_f32 v33, v32, v33')
        a('v_cndmask_b32 v33, 0, v33, vcc')
        self.wave_reduce([33], [57])
        a('v_rcp_f32 v33, v33')
        a('v_mul_f32 v32, v32, v33')
        a('ds_write_b32 v27, v32')
        a('s_waitcnt lgkmcnt(0)')
        a('s_barrier')
        a.label(w7d)
        a('s_waitcnt lgkmcnt(0)')
        a('s_barrier')
        self.stamp(7)
        st1 = self.lab('L_st1')
        a('s_cmp_lt_u32 s3, 2')
        a('s_cbranch_scc0 %s' % st1)
        a('ds_read_b128 v[36:39], v60')
        a('ds_read_b128 v[40:43], v60 offset:16')
        a('s_waitcnt lgkmcnt(0)')
        for i in range(4):
            a('v_add_f32 v%d, v%d, v%d' % (36 + i, 36 + i, 40 + i))
        a('v_add_f32 v36, v36, v37')
        a('v_add_f32 v38, v38, v39')
        a('v_add_f32 v36, v36, v38')
        a('v_cvt_pk_bf16_f32 v36, v36, v36')
        a('ds_write_b16 v61, v36')
        a('s_waitcnt lgkmcnt(0)')
        a.label(st1)
        a('s_barrier')
        for i in range(4):
            a('ds_read_b128 %s, v62 offset:%d' % (vr(64 + 4 * i, 4), i * 16))
        a('s_waitcnt lgkmcnt(0)')
        acc = list(range(32, 40))
        self.dot_paired(128, 16, list(range(64, 80)), acc)
        self.halve([(acc[i], acc[i + 4]) for i in range(4)], 'v_permlane32_swap_b32')
        for i in range(4):
            a('v_mov_b32 v%d, v%d' % (52 + i, acc[i]))
        for i in range(4):
            a('v_permlane16_swap_b32 v%d, v%d' % (52 + i, acc[i]))
        for i in range(4):
            a('v_add_f32 v%d, v%d, v%d' % (acc[i], acc[i], 52 + i))
        for i in range(4):
            a('v_and_or_b32 v%d, v%d, s%d, v50' % (acc[i], acc[i], S_M12))
        a('s_mov_b32 exec_lo, 0xffff')
        a('s_mov_b32 exec_hi, 0xffff')
        a('global_store_dwordx4 v48, %s, %s sc1' % (vr(acc[0], 4), sr(P_WS, 2)))
        a('s_mov_b64 exec, -1')
        self.stamp(9)
        tend = self.lab('L_tend')
        a('s_cmp_eq_u32 s3, 0')
        a('s_cbranch_scc0 %s' % tend)
        self.srd(SRD_B, P_X, 2048)
        a('v_and_b32 v52, 7, v0')
        a('v_lshlrev_b32 v52, 2, v52')
        a('v_lshrrev_b32 v53, 4, v0')
        a('v_add_u32 v52, v52, v53')
        a('s_lshl_b32 s4, s%d, 5' % S_IDX)
        a('v_add_u32 v53, s4, v52')
        a('v_lshlrev_b32 v53, 1, v53')
        a('buffer_load_ushort v54, v53, %s, 0 offen' % sr(SRD_B, 4))
        a('s_lshl_b32 s5, s%d, 7' % S_IDX)
        a('s_add_u32 s4, s5, %d' % WS_B)
        a('v_lshrrev_b32 v20, 3, v0')
        a('s_mov_b32 s5, %d' % BSTR)
        a('v_mul_lo_u32 v20, v20, s5')
        a('v_and_b32 v21, 7, v0')
        a('v_lshl_add_u32 v20, v21, 4, v20')
        a('v_add_u32 v20, s4, v20')
        for t in range(1, 4):
            a('v_add_u32 v%d, %d, v20' % (8 + t, t * 8 * BSTR))
        a('s_lshr_b32 s4, s%d, 3' % S_IDX)
        a('s_mul_i32 s4, s4, %d' % DSTR)
        a('s_and_b32 s5, s%d, 7' % S_IDX)
        a('s_lshl_b32 s5, s5, 7')
        a('s_add_u32 s4, s4, s5')
        a('s_add_u32 s4, s4, %d' % WS_D)
        a('v_lshrrev_b32 v24, 3, v0')
        a('s_mov_b32 s5, %d' % (4 * DSTR))
        a('v_mul_lo_u32 v24, v24, s5')
        a('v_and_b32 v21, 7, v0')
        a('v_lshl_add_u32 v24, v21, 4, v24')
        a('v_add_u32 v24, s4, v24')
        for t in range(1, 7):
            a('v_add_u32 v%d, %d, v24' % (24 + t, t * 32 * DSTR))
        a('s_lshl_b32 s4, s%d, 7' % S_IDX)
        a('s_add_u32 s4, s4, %d' % WS_C)
        a('v_and_b32 v31, 7, v0')
        a('v_lshlrev_b32 v31, 4, v31')
        a('v_lshrrev_b32 v23, 3, v0')
        a('v_lshl_add_u32 v31, v23, 12, v31')
        a('v_add_u32 v31, s4, v31')
        a('v_mov_b32 v22, s%d' % S_T12)
        a('s_mov_b32 s6, 0xfff')
        l = self.mpoll_begin()
        for t in range(4):
            a('global_load_dwordx4 %s, v%d, %s sc1' % (vr(64 + 4 * t, 4), 20 if t == 0 else 8 + t, sr(P_WS, 2)))
        a('s_waitcnt vmcnt(0)')
        self.untag(list(range(64, 80)), 22, 23)
        self.mpoll_end(l, 23, 6)
        self.stamp(10)
        for i in range(4):
            a('v_add_f32 v%d, v%d, v%d' % (64 + i, 64 + i, 68 + i))
            a('v_add_f32 v%d, v%d, v%d' % (72 + i, 72 + i, 76 + i))
        for i in range(4):
            a('v_add_f32 v%d, v%d, v%d' % (64 + i, 64 + i, 72 + i))
        self.halve([(64, 66), (65, 67)], 'v_permlane32_swap_b32')
        self.halve([(64, 65)], 'v_permlane16_swap_b32')
        a('v_add_f32_dpp v64, v64, v64 %s' % self.dpp('row_ror:8'))
        a('v_lshlrev_b32 v54, 16, v54')
        self.rnd_bf16(64, 64)
        a('v_add_f32 v64, v54, v64')
        self.rnd_bf16(51, 64)
        a('v_or_b32 v33, s%d, v51' % S_T16)
        a('v_mov_b32 v36, v33')
        a('v_mov_b32 v37, v33')
        a('v_permlane16_swap_b32 v36, v37')
        a('v_mov_b32 v38, v36')
        a('v_mov_b32 v39, v37')
        a('v_permlane32_swap_b32 v36, v38')
        a('v_permlane32_swap_b32 v37, v39')
        a('global_store_dwordx4 v31, v[36:39], %s sc1' % sr(P_WS, 2))
        self.stamp(11)
        l = self.mpoll_begin()
        for t in range(7):
            a('global_load_dwordx4 %s, v%d, %s sc1' % (vr(64 + 4 * t, 4), 24 + t, sr(P_WS, 2)))
        a('s_waitcnt vmcnt(0)')
        self.untag(list(range(64, 92)), 22, 23)
        self.mpoll_end(l, 23, 6)
        self.stamp(12)
        for i in range(4):
            a('v_add_f32 v%d, v%d, v%d' % (64 + i, 64 + i, 68 + i))
            a('v_add_f32 v%d, v%d, v%d' % (72 + i, 72 + i, 76 + i))
            a('v_add_f32 v%d, v%d, v%d' % (80 + i, 80 + i, 84 + i))
        for i in range(4):
            a('v_add_f32 v%d, v%d, v%d' % (64 + i, 64 + i, 72 + i))
            a('v_add_f32 v%d, v%d, v%d' % (80 + i, 80 + i, 88 + i))
        for i in range(4):
            a('v_add_f32 v%d, v%d, v%d' % (64 + i, 64 + i, 80 + i))
        self.halve([(64, 66), (65, 67)], 'v_permlane32_swap_b32')
        self.halve([(64, 65)], 'v_permlane16_swap_b32')
        a('v_add_f32_dpp v64, v64, v64 %s' % self.dpp('row_ror:8'))
        self.rnd_bf16(64, 64)
        a('v_add_f32 v64, v51, v64')
        a('v_cvt_pk_bf16_f32 v64, v64, v64')
        a('s_lshl_b32 s4, s%d, 6' % S_IDX)
        a('v_lshlrev_b32 v20, 1, v52')
        a('v_add_u32 v20, s4, v20')
        a('s_mov_b32 exec_lo, 0x00ff00ff')
        a('s_mov_b32 exec_hi, 0x00ff00ff')
        a('global_store_short v20, v64, %s' % sr(P_OUT, 2))
        noe = self.lab('L_noe')
        a('s_cmp_eq_u32 s%d, 0' % S_IDX)
        a('s_cbranch_scc0 %s' % noe)
        a('s_mov_b64 exec, 1')
        a('v_mov_b32 v20, %d' % WS_E)
        a('v_mov_b32 v21, s%d' % S_T)
        a('global_store_dword v20, v21, %s' % sr(P_WS, 2))
        a.label(noe)
        a('s_mov_b64 exec, -1')
        self.stamp(13)
        a.label(tend)
        self.dump_stamps()
        a('s_endpgm')

if __name__ == '__main__':
    ap = argparse.ArgumentParser()
    ap.add_argument('-o', default='k8.s')
    ap.add_argument('--diag', action='store_true')
    ap.add_argument('--dbgts', action='store_true')
    ap.add_argument('--opt', default='')
    args = ap.parse_args()
    opt = {}
    for kv in args.opt.split(','):
        if kv:
            k, v = kv.split('='); opt[k] = int(v)
    g = Gen(diag=args.diag or args.dbgts, dbgts=args.dbgts, opt=opt)
    txt = g.build()
    hdr = open('sequential_preLN__gqa_block_cached__geglu_ffn__decode.s.ref').read().split('; Override')[0]
    open(args.o, 'w').write(hdr + txt)
    print('wrote', args.o, 'lines', txt.count(chr(10)), 'nops', g.a.nnops)
```
